```python
import torch

def _softmax(x, axis=-1):
    return torch.softmax(x, dim=axis)
def _gelu(x):
    return torch.nn.functional.gelu(x, approximate="tanh")
def _silu(x):
    return torch.nn.functional.silu(x)
def _sigmoid(x):
    return torch.sigmoid(x)
def _layernorm(x, axis=-1, eps=1e-5):
    m = x.mean(dim=axis, keepdim=True)
    v = x.var(dim=axis, keepdim=True, unbiased=False)
    return (x - m) / torch.sqrt(v + eps)
def _scatter_add(tgt, idx, src, axis=0):
    return tgt.clone().index_add_(axis, idx, src)
def _segment_sum(src, seg, n):
    out = torch.zeros((n,) + src.shape[1:], dtype=src.dtype)
    return out.index_add_(0, seg, src)
def _pad(x, pw):
    flat = tuple(v for pair in reversed(pw) for v in pair)
    return torch.nn.functional.pad(x, flat)

kernel_name = 'standalone__mha_block_cached__near_ridge'

def setup_inputs():

    _w = (lambda a: (lambda t: t.to(torch.bfloat16) if t.is_floating_point() else t)(torch.as_tensor(a)))
    B, Sq, D = 8, 144, 640
    H, Sk, Dh = 32, 1024, 128
    return {
        "x": _w((lambda *s: torch.randn(*s, dtype=torch.bfloat16) * 0.8)(B, Sq, D)),
        "k_cache": _w((lambda *s: torch.randn(*s, dtype=torch.bfloat16) * 0.8)(B, H, Sk, Dh)),
        "v_cache": _w((lambda *s: torch.randn(*s, dtype=torch.bfloat16) * 0.05)(B, H, Sk, Dh)),
        "wq": _w((lambda *s: torch.randn(*s, dtype=torch.bfloat16) * 0.8)(D, H * Dh) * (D ** -0.5)),
        "wo": _w((lambda *s: torch.randn(*s, dtype=torch.bfloat16) * 0.05)(H * Dh, D) * ((H * Dh) ** -0.5)),
    }

def reference(x, k_cache, v_cache, wq, wo):
    B, Sq, D = x.shape
    H, Dh = 32, 128
    q = (lambda x, *d: x.permute(*d))((x @ wq).reshape(B, Sq, H, Dh), 0, 2, 1, 3)
    scores = torch.einsum("bhqd,bhkd->bhqk", q, k_cache) * (Dh ** -0.5)
    p = _softmax(scores, axis=-1)
    o = torch.einsum("bhqk,bhkd->bhqd", p, v_cache)
    return (lambda x, *d: x.permute(*d))(o, 0, 2, 1, 3).reshape(B, Sq, H * Dh) @ wo
```

```python
import re

REG = re.compile(r"\b([vas])(\d+)\b|\b([vas])\[(\d+):(\d+)\]|\b(vcc|m0|exec)\b")


def regs_of(tok):
    out = set()
    for m in REG.finditer(tok):
        if m.group(1):
            out.add((m.group(1), int(m.group(2))))
        elif m.group(3):
            for i in range(int(m.group(4)), int(m.group(5)) + 1):
                out.add((m.group(3), i))
        else:
            out.add((m.group(6), 0))
    return out


TRANS = ("v_exp_f32", "v_log_f32", "v_rcp_f32", "v_rsq_f32", "v_sqrt_f32")


class Ins:
    def __init__(self, text):
        self.text = text
        parts = text.split(None, 1)
        self.op = parts[0]
        ops = [x.strip() for x in parts[1].split(",")] if len(parts) > 1 else []
        self.ops = ops
        op = self.op
        self.kind = "other"
        self.w, self.r, self.srcc, self.ab, self.sdata = set(), set(), set(), set(), set()
        self.states = 1
        if op == "s_nop":
            self.states = int(ops[0]) + 1
        if op.startswith("v_mfma"):
            self.kind = "mfma"
            self.w = regs_of(ops[0])
            self.ab = regs_of(ops[1]) | regs_of(ops[2])
            self.srcc = regs_of(ops[3])
            self.r = self.ab | self.srcc
            self.passes = 8 if "32x32" in op else 4
        elif op.startswith("v_"):
            self.kind = "valu"
            if op.startswith("v_permlane"):
                self.w = regs_of(ops[0]) | regs_of(ops[1])
                self.r = set(self.w)
            else:
                self.w = regs_of(ops[0])
                for o in ops[1:]:
                    self.r |= regs_of(o)
                if op.startswith("v_fmac") or op.startswith("v_writelane"):
                    self.r |= self.w
                if op.startswith("v_cndmask") and len(ops) == 3:
                    self.r.add(("vcc", 0))
        elif op.startswith("ds_"):
            self.kind = "ds"
            if "read" in op:
                self.w = regs_of(ops[0])
                self.r = regs_of(ops[1].split()[0])
            else:
                for o in ops:
                    self.r |= regs_of(o.split()[0])
        elif op.startswith("buffer_") or op.startswith("global_"):
            self.kind = "vmem"
            lds = text.rstrip().endswith(" lds")
            if op in ("buffer_inv", "buffer_wbl2"):
                pass
            elif lds:
                for o in ops:
                    self.r |= regs_of(o.split()[0])
                self.r.add(("m0", 0))
                self.lds = True
            elif "load" in op:
                self.w = regs_of(ops[0])
                for o in ops[1:]:
                    self.r |= regs_of(o.split()[0])
            else:
                for o in ops:
                    self.r |= regs_of(o.split()[0])
                if "x4" in op or "x3" in op:
                    self.sdata = regs_of(ops[0])
        elif op.startswith("s_"):
            self.kind = "salu"
            if op.startswith(("s_cmp", "s_cbranch", "s_branch", "s_waitcnt", "s_barrier", "s_nop", "s_sleep",
                              "s_endpgm", "s_setprio", "s_setpc", "s_bitcmp")):
                for o in ops:
                    self.r |= regs_of(o)
            elif ops:
                self.w = regs_of(ops[0])
                for o in ops[1:]:
                    self.r |= regs_of(o)


def need(p, c):
    n = 0
    vg = lambda s: {x for x in s if x[0] in "va" and len(x[0]) == 1}
    sg = lambda s: {x for x in s if x[0] in ("s", "vcc")}
    if p.kind == "valu":
        if c.kind == "mfma" and vg(p.w) & c.r:
            n = max(n, 2)
        if c.kind == "valu":
            if c.op.startswith("v_permlane") and vg(p.w) & c.r:
                n = max(n, 2)
            if c.op.startswith(("v_readfirstlane", "v_readlane")) and vg(p.w) & c.r:
                n = max(n, 1)
            if "dpp" in c.op and vg(p.w) & c.r:
                n = max(n, 2)
            if p.op.startswith(TRANS) and not c.op.startswith(TRANS) and vg(p.w) & c.r:
                n = max(n, 1)
            if sg(p.w) & c.r:
                n = max(n, 2)
        if c.kind == "vmem" and sg(p.w) & c.r:
            n = max(n, 5)
        if ("exec", 0) in p.w and c.kind == "mfma":
            n = max(n, 4)
    if p.kind == "mfma":
        k = {4: 0, 8: 1}[p.passes]
        if c.kind == "mfma":
            if p.w & c.ab:
                n = max(n, (8, 12)[k])
            if p.w & c.srcc and p.w != c.srcc:
                n = max(n, (6, 10)[k])
            if p.w & c.w and not (p.w & c.srcc):
                n = max(n, (6, 10)[k])
        elif c.kind in ("valu", "ds", "vmem"):
            if p.w & (c.r | c.w):
                n = max(n, (8, 12)[k])
            if c.kind == "valu" and p.srcc & c.w:
                n = max(n, (3, 7)[k])
    if p.kind == "salu" and ("m0", 0) in p.w and c.kind == "vmem" and getattr(c, "lds", False):
        n = max(n, 1)
    if p.kind == "vmem" and p.sdata and p.sdata & c.w:
        n = max(n, 2)
    return n


def check(lines, verbose=True):
    ins = []
    for ln in lines:
        t = ln.split(";")[0].strip()
        if not t or t.startswith(".") or t.endswith(":"):
            continue
        ins.append(Ins(t))
    bad = 0
    for i, c in enumerate(ins):
        dist = 0
        for j in range(i - 1, max(-1, i - 24), -1):
            p = ins[j]
            if p.op in ("s_branch", "s_endpgm", "s_setpc_b64"):
                break
            r = need(p, c)
            if r > dist:
                bad += 1
                if verbose:
                    print(f"HAZARD need {r} have {dist}: [{p.text}] -> [{c.text}]")
            dist += p.states
            if dist >= 20:
                break
    return bad
```

```python
import math
import struct
import sys

from hazard import check, regs_of

NAME = "standalone__mha_block_cached__near_ridge"
STAMP_OFF = 0x8000000
FLAG_OFF = 0x1000000

DEFAULTS = dict(
    stamps=False,
    kvpol="nt",
    qpol="",
    wpol="",
    mapping="42",
    rot=True,
    exp64=False,
    pf_code=True,
)


def f2u(x):
    return struct.unpack("<I", struct.pack("<f", x))[0]


def v(a, n=1):
    return f"v{a}" if n == 1 else f"v[{a}:{a + n - 1}]"


def a_(a, n=1):
    return f"a{a}" if n == 1 else f"a[{a}:{a + n - 1}]"


S_WAVE = 3
SRD_K, SRD_V, SRD_X, SRD_WQ, SRD_WO, SRD_DBG, SRD_WS, SRD_OUT = 20, 24, 28, 32, 36, 40, 44, 48
S_H, S_B, S_BH = 52, 53, 54
S_T0, S_T1, S_T2 = 55, 56, 57
S_RET = 58
S_CNT, S_SLOT, S_FIRST, S_MASK = 60, 61, 62, 63
S_J, S_B2, S_MT, S_NT = 64, 65, 66, 67
S_FLAG, S_WOFF, S_WLDS, S_OOFF = 68, 69, 70, 71
S_C, S_XO, S_WO_, S_KO, S_KS = 72, 73, 74, 75, 76
S_STAMP = 78
SRD_CODE = 96

QSLOT = 34816
QS0 = 163840 - 3 * QSLOT
KRING, VRING = 0, 32768
WREG = 40960

O_ = lambda j, t: 16 + 32 * j + 4 * t
L_ = lambda j: 112 + 4 * j
NM = lambda j: 124 + 4 * j
S_ = lambda j, u: 136 + 8 * j + 4 * u
E_ = 160
P_ = lambda j: 168 + 4 * j
Q_ = lambda j, s: 180 + 16 * j + 4 * s
AK = lambda s: 228 + s
AV = lambda t: 232 + t
AW = lambda t: 240 + t
AX = lambda s: 248 + s
V_ACC = 250
KF = lambda u, s: 16 * u + 4 * s
VF = lambda t: 32 + 4 * t
ONES = 64
WF = lambda t: 4 * t
XF = lambda p, j: 32 + 12 * p + 4 * j


class Gen:
    def __init__(self, **kw):
        self.o = dict(DEFAULTS)
        self.o.update(kw)
        self.L = []
        self.lq = []
        self.nstamp = 0

    def e(self, s):
        for ln in s.split("\n"):
            ln = ln.strip()
            if ln:
                self.L.append(ln)

    def ds(self, text):
        self.e(text)
        dst = text.split(None, 1)[1].split(",")[0]
        self.lq.append(regs_of(dst) if "read" in text.split()[0] else set())

    def lwait(self, regs):
        idx = -1
        for i, d in enumerate(self.lq):
            if d & regs:
                idx = i
        if idx < 0:
            return
        n = len(self.lq) - 1 - idx
        n = min(n, 15)
        self.e(f"s_waitcnt lgkmcnt({n})")
        self.lq = self.lq[len(self.lq) - n:] if n else []

    def lwait0(self):
        self.e("s_waitcnt lgkmcnt(0)")
        self.lq = []

    def mfma(self, d, a, b, c):
        self.lwait(regs_of(a) | regs_of(b))
        self.e(f"v_mfma_f32_16x16x32_bf16 {d}, {a}, {b}, {c}")

    def stamp(self):
        if self.o["stamps"]:
            k = S_STAMP + 2 * self.nstamp
            assert k + 1 < SRD_CODE
            self.e(f"s_memrealtime s[{k}:{k + 1}]")
            self.nstamp += 1

    def srd(self, d, lo, off, size):
        if off:
            self.e(f"s_add_u32 s{d}, s{lo}, {off}\ns_addc_u32 s{d + 1}, s{lo + 1}, 0")
        else:
            self.e(f"s_mov_b32 s{d}, s{lo}\ns_mov_b32 s{d + 1}, s{lo + 1}")
        self.e(f"s_mov_b32 s{d + 2}, {size}\ns_mov_b32 s{d + 3}, 0x20000")

    def prologue(self):
        e = self.e
        e("s_cmp_ge_u32 s2, 256\ns_cbranch_scc1 L_end")
        e("s_load_dwordx8 s[4:11], s[0:1], 0")
        e("s_load_dwordx8 s[12:19], s[0:1], 32")
        self.stamp()
        e("v_lshrrev_b32 v1, 6, v0")
        e("v_and_b32 v0, 63, v0")
        e(f"v_readfirstlane_b32 s{S_WAVE}, v1")
        e(f"s_and_b32 s{S_H}, s2, 7\ns_lshl_b32 s{S_H}, s{S_H}, 2")
        e(f"s_lshr_b32 s{S_J}, s2, 3\ns_and_b32 s{S_T0}, s{S_J}, 3\ns_add_u32 s{S_H}, s{S_H}, s{S_T0}")
        e(f"s_lshr_b32 s{S_B}, s2, 5")
        e(f"s_lshl_b32 s{S_BH}, s{S_B}, 5\ns_add_u32 s{S_BH}, s{S_BH}, s{S_H}")
        if self.o["mapping"] == "81":
            e(f"s_and_b32 s{S_B2}, s2, 7")
            e(f"s_mul_i32 s{S_NT}, s{S_J}, 0x5556\ns_lshr_b32 s{S_NT}, s{S_NT}, 16")
            e(f"s_mul_i32 s{S_MT}, s{S_NT}, 3\ns_sub_u32 s{S_MT}, s{S_J}, s{S_MT}")
        else:
            e(f"s_mul_i32 s{S_NT}, s{S_J}, 0x2AAB\ns_lshr_b32 s{S_NT}, s{S_NT}, 16")
            e(f"s_mul_i32 s{S_MT}, s{S_NT}, 6\ns_sub_u32 s{S_MT}, s{S_J}, s{S_MT}")
            e(f"s_and_b32 s{S_T0}, s2, 1\ns_mul_i32 s{S_T0}, s{S_T0}, 5\ns_add_u32 s{S_NT}, s{S_NT}, s{S_T0}")
            e(f"s_and_b32 s{S_B2}, s2, 6")
            e(f"s_cmp_ge_u32 s{S_MT}, 3\ns_cselect_b32 s{S_T0}, 1, 0\ns_add_u32 s{S_B2}, s{S_B2}, s{S_T0}")
            e(f"s_mul_i32 s{S_T0}, s{S_T0}, 3\ns_sub_u32 s{S_MT}, s{S_MT}, s{S_T0}")
        e(f"s_lshl_b32 s{S_FLAG}, s{S_BH}, 7\ns_add_u32 s{S_FLAG}, s{S_FLAG}, {FLAG_OFF}")
        e(f"s_lshl_b32 s{S_T0}, s{S_BH}, 18")
        e(f"s_mul_i32 s{S_T1}, s{S_B}, 184320")
        e("s_waitcnt lgkmcnt(0)")
        self.srd(SRD_X, 4, f"s{S_T1}", 184320)
        self.srd(SRD_WQ, 10, None, 5242880)
        self.srd(SRD_K, 6, f"s{S_T0}", 0x40000)
        self.srd(SRD_V, 8, f"s{S_T0}", 0x40000)
        self.srd(SRD_WO, 12, None, 5242880)
        self.srd(SRD_OUT, 14, None, 1474560)
        self.srd(SRD_DBG, 16, None, 256)
        self.srd(SRD_WS, 18, None, 0x10000000)
        e(f"s_cmp_eq_u32 s{S_WAVE}, 3\ns_cbranch_scc1 L_loader")

    def loader(self):
        e, o = self.e, self.o
        e("L_loader:")
        e("v_lshrrev_b32 v1, 4, v0\nv_and_b32 v2, 15, v0\nv_lshrrev_b32 v3, 3, v0\nv_and_b32 v4, 7, v0")
        WQA, XA, KA, VA = 16, 20, 24, 28
        for b in range(4):
            e(f"v_or_b32 v5, {(b >> 1) << 2}, v1\nv_lshlrev_b32 v5, 1, v5\nv_xor_b32 v5, v5, v2\nv_lshlrev_b32 v5, 4, v5")
            e(f"v_lshl_add_u32 v5, v1, 13, v5\nv_add_u32 v{WQA + b}, {b * 4 * 8192 - b * 1024}, v5")
        e("v_mul_u32_u24 v6, 1280, v3")
        for b in range(4):
            e(f"v_or_b32 v5, {4 * (b & 1)}, v1\nv_xor_b32 v5, v5, v4\nv_lshl_add_u32 v5, v5, 4, v6")
            e(f"v_add_u32 v{XA + b}, {b * 8 * 1280 - b * 1024}, v5")
        if o["rot"]:
            e(f"s_and_b32 s{S_T0}, s{S_J}, 3\ns_mul_i32 s{S_T0}, s{S_T0}, 5\ns_add_u32 s{S_T0}, s{S_T0}, 1\ns_lshr_b32 s{S_T0}, s{S_T0}, 1")
            e(f"s_add_u32 s{S_C}, s{S_B}, s{S_T0}\ns_cmp_ge_u32 s{S_C}, 10\ns_cselect_b32 s{S_T0}, 10, 0\ns_sub_u32 s{S_C}, s{S_C}, s{S_T0}")
        else:
            e(f"s_mov_b32 s{S_C}, 0")
        e(f"s_mov_b32 s{S_SLOT}, {QS0}")

        def qstep():
            e(f"s_lshl_b32 s{S_WO_}, s{S_C}, 19\ns_lshl_b32 s{S_T0}, s{S_H}, 8\ns_add_u32 s{S_WO_}, s{S_WO_}, s{S_T0}")
            e(f"s_lshl_b32 s{S_XO}, s{S_C}, 7")
            for a in range(5):
                if a < 4:
                    e(f"s_add_u32 m0, s{S_SLOT}, {a * 4096}\ns_nop 0")
                    for b in range(4):
                        e(f"buffer_load_dwordx4 v{WQA + b}, s[{SRD_WQ}:{SRD_WQ + 3}], s{S_WO_} offen offset:{b * 1024} {o['qpol']} lds")
                    e(f"s_add_u32 s{S_WO_}, s{S_WO_}, {16 * 8192}")
                e(f"s_add_u32 m0, s{S_SLOT}, {16384 + a * 4096}\ns_nop 0")
                for b in range(4 if a < 4 else 2):
                    e(f"buffer_load_dwordx4 v{XA + b}, s[{SRD_X}:{SRD_X + 3}], s{S_XO} offen offset:{b * 1024} {o['qpol']} lds")
                e(f"s_add_u32 s{S_XO}, s{S_XO}, {32 * 1280}")
            e(f"s_add_u32 s{S_C}, s{S_C}, 1\ns_cmp_eq_u32 s{S_C}, 10\ns_cselect_b32 s{S_C}, 0, s{S_C}")
            e(f"s_add_u32 s{S_SLOT}, s{S_SLOT}, {QSLOT}\ns_cmp_eq_u32 s{S_SLOT}, 163840\ns_cselect_b32 s{S_SLOT}, {QS0}, s{S_SLOT}")

        e(f"s_mov_b32 s{S_CNT}, 0")
        e("L_ldq:")
        qstep()
        e(f"s_add_u32 s{S_CNT}, s{S_CNT}, 1\ns_cmp_eq_u32 s{S_CNT}, 1\ns_cbranch_scc1 L_ldq")
        e("s_waitcnt vmcnt(34)\ns_barrier")
        e(f"s_cmp_lt_u32 s{S_CNT}, 10\ns_cbranch_scc1 L_ldq")
        self.stamp()
        for b in range(4):
            e(f"v_or_b32 v5, {4 * b}, v1\nv_xor_b32 v5, v5, v2\nv_lshlrev_b32 v5, 4, v5\nv_lshl_add_u32 v{KA + b}, v1, 8, v5")
        for b in range(2):
            e(f"v_or_b32 v5, {4 * b}, v1\nv_lshlrev_b32 v5, 1, v5\nv_xor_b32 v5, v5, v2\nv_lshlrev_b32 v5, 4, v5\nv_lshl_add_u32 v{VA + b}, v1, 8, v5")

        def tile(srd, areg, nreg, soff, lds):
            for a in range(2):
                e(f"s_add_u32 m0, s{lds[0]}, {lds[1] + a * 4096}")
                e(f"s_add_u32 s{S_T0}, s{soff[0]}, {soff[1] + a * 4096}")
                for b in range(4):
                    e(f"buffer_load_dwordx4 v{areg + b % nreg}, s[{srd}:{srd + 3}], s{S_T0} offen offset:{b * 1024} {o['kvpol']} lds")

        e(f"s_mov_b32 s{S_KO}, 0\ns_mov_b32 s{S_KS}, 0")
        tile(SRD_K, KA, 4, (S_KO, 0), (S_KS, KRING))
        tile(SRD_K, KA, 4, (S_KO, 8192), (S_KS, KRING + 8192))
        tile(SRD_V, VA, 2, (S_KO, 0), (S_KS, VRING))
        e("s_waitcnt vmcnt(24)\ns_barrier")
        tile(SRD_K, KA, 4, (S_KO, 16384), (S_KS, KRING + 16384))
        tile(SRD_V, VA, 2, (S_KO, 8192), (S_KS, VRING + 8192))
        tile(SRD_K, KA, 4, (S_KO, 24576), (S_KS, KRING + 24576))
        tile(SRD_V, VA, 2, (S_KO, 16384), (S_KS, VRING + 16384))
        e("s_waitcnt vmcnt(48)\ns_barrier")
        self.stamp()
        e("v_mov_b32 v8, 0\nv_mov_b32 v9, 0\nv_mov_b32 v10, 1\ns_mov_b64 exec, 1")
        e(f"buffer_store_dword v8, v9, s[{SRD_WS}:{SRD_WS + 3}], s{S_FLAG} offen sc1")
        e("s_mov_b64 exec, -1")
        e(f"s_mov_b32 s{S_CNT}, 0\ns_mov_b32 s{S_KO}, {3 * 8192}\ns_mov_b32 s{S_KS}, 0\ns_mov_b32 s{S_SLOT}, {3 * 8192}")
        e("L_ldkv:")
        e("s_waitcnt vmcnt(32)\ns_barrier")
        tile(SRD_K, KA, 4, (S_KO, 8192), (S_KS, KRING))
        tile(SRD_V, VA, 2, (S_KO, 0), (S_SLOT, VRING))
        e(f"s_add_u32 s{S_KO}, s{S_KO}, 8192")
        e(f"s_mov_b32 s{S_SLOT}, s{S_KS}\ns_add_u32 s{S_KS}, s{S_KS}, 8192\ns_and_b32 s{S_KS}, s{S_KS}, 0x7fff")
        e(f"s_cmp_lg_u32 s{S_CNT}, 4\ns_cbranch_scc1 L_ldkv_n")
        e(f"s_lshl_b32 s{S_T0}, s{S_B}, 2\ns_mov_b64 exec, 1")
        e(f"buffer_atomic_add v10, v9, s[{SRD_DBG}:{SRD_DBG + 3}], s{S_T0} offen sc1")
        e("s_mov_b64 exec, -1")
        e("L_ldkv_n:")
        e(f"s_add_u32 s{S_CNT}, s{S_CNT}, 1\ns_cmp_lt_u32 s{S_CNT}, 32\ns_cbranch_scc1 L_ldkv")
        self.stamp()
        e("s_waitcnt vmcnt(0)")
        e("s_barrier")
        e("s_branch L_proj")

    def compute_setup(self):
        e = self.e
        e("v_lshrrev_b32 v1, 4, v0\nv_and_b32 v2, 15, v0\nv_lshrrev_b32 v3, 2, v2\nv_and_b32 v4, 3, v0")
        e("v_and_b32 v5, 1, v1\nv_lshlrev_b32 v6, 1, v5\nv_lshl_or_b32 v5, v5, 2, v3\nv_lshrrev_b32 v7, 1, v1\nv_or_b32 v6, v6, v7")
        e("v_lshl_add_u32 v7, v1, 3, v3\nv_lshlrev_b32 v7, 8, v7\nv_lshl_add_u32 v7, v4, 3, v7")
        e(f"v_add_u32 v7, {QS0}, v7")
        for t in range(8):
            e(f"v_xor_b32 v8, {t}, v5\nv_lshl_add_u32 v{AW(t)}, v8, 5, v7")
        e(f"s_mul_i32 s{S_T0}, s{S_WAVE}, {48 * 128}\ns_add_u32 s{S_T0}, s{S_T0}, {QS0 + 16384}")
        e(f"v_lshlrev_b32 v7, 7, v2\nv_add_u32 v7, s{S_T0}, v7\nv_lshrrev_b32 v9, 1, v2")
        for s in range(2):
            e(f"v_or_b32 v8, {4 * s}, v1\nv_xor_b32 v8, v8, v9\nv_lshl_add_u32 v{AX(s)}, v8, 4, v7")
        e("v_lshlrev_b32 v7, 8, v2")
        for s in range(4):
            e(f"v_or_b32 v8, {4 * s}, v6\nv_xor_b32 v8, v8, v2\nv_lshl_add_u32 v{AK(s)}, v8, 4, v7")
        e(f"v_lshl_add_u32 v7, v1, 2, v3\nv_lshlrev_b32 v7, 8, v7\nv_lshl_add_u32 v7, v4, 3, v7\nv_add_u32 v7, {VRING}, v7")
        for t in range(8):
            e(f"v_xor_b32 v8, {t}, v5\nv_lshl_add_u32 v{AV(t)}, v8, 5, v7")
        for r in range(16, 112):
            e(f"v_mov_b32 v{r}, 0")

    def qphase(self):
        e = self.e

        def rdw(t, s):
            self.ds(f"ds_read_b64_tr_b16 {a_(WF(t), 2)}, v{AW(t)} offset:{s * 8192}")
            self.ds(f"ds_read_b64_tr_b16 {a_(WF(t) + 2, 2)}, v{AW(t)} offset:{s * 8192 + 1024}")

        def rdx(p, j):
            self.ds(f"ds_read_b128 {a_(XF(p, j), 4)}, v{AX(p)} offset:{j * 2048}")

        def body():
            for s in range(2):
                for t in range(8):
                    for j in range(3):
                        self.mfma(v(O_(j, t), 4), a_(WF(t), 4), a_(XF(s, j), 4), v(O_(j, t), 4))
                        if s == 0 and t == 1:
                            rdx(1, j)
                        if s == 1 and t == 2:
                            rdx(0, j)
                    if s == 0:
                        rdw(t, 1)
                    elif t == 1:
                        self.lwait0()
                        e("s_barrier")
                        e(f"s_add_u32 s{S_SLOT}, s{S_SLOT}, 1\ns_cmp_eq_u32 s{S_SLOT}, 3")
                        e(f"s_cselect_b32 s{S_T0}, {(-2 * QSLOT) & 0xffffffff}, s{S_T1}\ns_cselect_b32 s{S_SLOT}, 0, s{S_SLOT}")
                        for r in (AW(0), AW(1), AX(0), AX(1), AW(2)):
                            e(f"v_add_u32 v{r}, s{S_T0}, v{r}")
                        rdw(0, 0)
                        rdw(1, 0)
                    elif t >= 2:
                        if t < 7:
                            e(f"v_add_u32 v{AW(t + 1)}, s{S_T0}, v{AW(t + 1)}")
                        rdw(t, 0)

        e("s_barrier")
        rdw(0, 0)
        rdw(1, 0)
        for j in range(3):
            rdx(0, j)
        for t in range(2, 8):
            rdw(t, 0)
        e(f"s_mov_b32 s{S_SLOT}, 0\ns_mov_b32 s{S_T1}, {QSLOT}\ns_mov_b32 s{S_CNT}, 10")
        entry = [set(x) for x in self.lq]
        e("L_q:")
        body()
        assert [set(x) for x in self.lq][-len(self.lq):] == entry[-len(self.lq):], "loop-carried LDS queue differs"
        e(f"s_sub_u32 s{S_CNT}, s{S_CNT}, 1\ns_cmp_lg_u32 s{S_CNT}, 0\ns_cbranch_scc1 L_q")
        self.lwait0()
        for s in range(4):
            for u in range(2):
                self.ds(f"ds_read_b128 {a_(KF(u, s), 4)}, v{AK(s)} offset:{u * 4096}")
        c = math.log2(math.e) / math.sqrt(128.0)
        e(f"s_mov_b32 s{S_T0}, {f2u(c):#x}")
        for j in range(3):
            for t in range(8):
                for r in range(4):
                    e(f"v_mul_f32 v{O_(j, t) + r}, s{S_T0}, v{O_(j, t) + r}")
            for s in range(4):
                q = Q_(j, s)
                e(f"v_cvt_pk_bf16_f32 v{q}, v{O_(j, 2 * s)}, v{O_(j, 2 * s) + 1}")
                e(f"v_cvt_pk_bf16_f32 v{q + 1}, v{O_(j, 2 * s) + 2}, v{O_(j, 2 * s) + 3}")
                e(f"v_cvt_pk_bf16_f32 v{q + 2}, v{O_(j, 2 * s + 1)}, v{O_(j, 2 * s + 1) + 1}")
                e(f"v_cvt_pk_bf16_f32 v{q + 3}, v{O_(j, 2 * s + 1) + 2}, v{O_(j, 2 * s + 1) + 3}")
            e("s_nop 0")
            for s in range(4):
                q = Q_(j, s)
                e(f"v_permlane16_swap_b32 v{q}, v{q + 2}\nv_permlane16_swap_b32 v{q + 1}, v{q + 3}")
        for r in range(16, 136):
            e(f"v_mov_b32 v{r}, 0")
        for r in range(4):
            e(f"v_mov_b32 v{P_(2) + r}, 0")
        e("v_mov_b32 v1, 0x3f803f80")
        for r in range(4):
            e(f"v_accvgpr_write_b32 a{ONES + r}, v1")
        for r in range(32):
            e(f"v_accvgpr_write_b32 a{VF(0) + r}, 0")
        e(f"s_mov_b32 s{S_FIRST}, 1\ns_mov_b32 s{S_MASK}, 0x40004000\ns_mov_b32 s{S_CNT}, 8")

    def qk(self, j):
        out = []
        for s in range(4):
            for u in range(2):
                c = v(NM(j), 4) if s == 0 else v(S_(j, u), 4)
                out.append((v(S_(j, u), 4), a_(KF(u, s), 4), v(Q_(j, s), 4), c))
        return out

    def pv(self, j):
        out = [(v(O_(j, t), 4), a_(VF(t), 4), v(P_(j), 4), v(O_(j, t), 4)) for t in range(8)]
        out.append((v(L_(j), 4), a_(ONES, 4), v(P_(j), 4), v(L_(j), 4)))
        return out

    def sm_ops(self, j, site):
        ex = "v_exp_f32_e64" if self.o["exp64"] else "v_exp_f32"
        X = [f"{ex} v{E_ + k}, v{S_(j, 0) + k}" for k in range(8)]
        C = [f"v_cvt_pk_bf16_f32 v{P_(j) + k}, v{E_ + 2 * k}, v{E_ + 2 * k + 1}" for k in range(4)]
        p = P_(j)
        chk = [f"v_or3_b32 v{V_ACC}, v{p}, v{p + 1}, v{p + 2}",
               f"v_bitop3_b32 v{V_ACC}, v{V_ACC}, v{p + 3}, s{S_MASK} bitop3:0xa8",
               f"v_cmp_ne_u32 vcc, s{S_FIRST}, v{V_ACC}",
               f"s_cbranch_vccnz L_stub{site}\nL_ret{site}:"]
        return X, C, chk

    def block(self, a, j, site, tail=False):
        e = self.e
        M = ([] if tail else self.qk((j + 1) % 3)) + self.pv((j + 2) % 3)
        X, C, chk = self.sm_ops(j, site)
        fill = {k: [] for k in range(-1, len(M))}

        def rdv(t, hh):
            return ("ds", f"ds_read_b64_tr_b16 {a_(VF(t) + 2 * hh, 2)}, v{AV(t)} offset:{a * 8192 + hh * 4096}")

        def rdk(k):
            u, s = k & 1, k >> 1
            return ("ds", f"ds_read_b128 {a_(KF(u, s), 4)}, v{AK(s)} offset:{((a + 1) & 3) * 8192 + u * 4096}")

        if tail:
            seq = [[X[0]], [X[1]], [X[2], C[0]], [X[3], X[4]], [X[5], C[1]], [X[6], X[7]], [C[2]], [C[3], chk[0]],
                   [chk[1], chk[2]]]
            for k, ops in enumerate(seq):
                fill[k] += [("i", x) for x in ops]
            fill[8].append(("i", chk[3]))
        else:
            pos = {0: [X[0]], 1: [X[1]], 2: [X[2]], 3: [X[3]], 4: [C[0], C[1]], 5: [X[4]], 6: [X[5]], 7: [X[6]],
                   8: [X[7]], 9: [C[2]], 10: [C[3]], 11: [chk[0]], 12: [chk[1]], 13: [chk[2]], 16: [chk[3]]}
            if j == 1:
                pos = {0: [X[0]], 1: [X[1]], 2: [X[2]], 3: [X[3]], 4: [C[0]], 5: [C[1]], 6: [X[4]], 7: [X[5]],
                       8: [X[6]], 9: [X[7]], 10: [C[2]], 11: [C[3]], 12: [chk[0]], 13: [chk[1]], 14: [chk[2]],
                       16: [chk[3]]}
            for k, ops in pos.items():
                fill[k] += [("i", x) for x in ops]
            if j == 0:
                fill[7].append(("i", "s_barrier"))
                for n in range(8):
                    fill[9 + n].append(rdv(n >> 1, n & 1))
            if j == 1:
                for n in range(8):
                    fill[min(n * 3 // 4, 5)].append(rdv(4 + (n >> 1), n & 1))
                for k in range(8):
                    fill[8 + k].append(rdk(k))
        waits = {}
        if not tail and j == 1:
            waits = {8: regs_of(a_(VF(0), 16)), 12: regs_of(a_(VF(4), 16))}
        if not tail and j == 2:
            waits = {0: regs_of(a_(KF(0, 0), 8)) | regs_of(a_(KF(1, 0), 8)), 4: regs_of(a_(0, 32))}
        for k, m in enumerate(M):
            if k in waits:
                self.lwait(waits[k])
            self.mfma(*m)
            for kind, x in fill[k]:
                if kind == "ds":
                    self.ds(x)
                else:
                    e(x)
        if j == 2 and a == 0:
            e(f"s_mov_b32 s{S_FIRST}, 0")

    def attention(self):
        e = self.e
        for m in self.qk(0):
            self.mfma(*m)
        assert not self.lq
        e("s_nop 7")
        e(".p2align 3")
        e("L_att:")
        site = 0
        self.sites = []
        for a in range(4):
            for j in range(3):
                if a == 3 and j == 2:
                    e(f"s_sub_u32 s{S_CNT}, s{S_CNT}, 1\ns_cmp_eq_u32 s{S_CNT}, 0\ns_cbranch_scc1 L_att_tail")
                    saved = [set(x) for x in self.lq]
                self.block(a, j, site)
                self.sites.append(j)
                site += 1
        assert not self.lq
        e("s_branch L_att")
        e("L_att_tail:")
        self.lq = saved
        self.lwait0()
        e("s_barrier")
        self.block(3, 2, site, tail=True)
        self.sites.append(2)
        e("s_nop 0")
        for m in self.pv(2):
            self.mfma(*m)
        e(f"s_mul_i32 s{S_T0}, s{S_B}, 9\ns_mul_i32 s{S_T1}, s{S_WAVE}, 3\ns_add_u32 s{S_T0}, s{S_T0}, s{S_T1}")
        e(f"s_lshl_b32 s{S_T0}, s{S_T0}, 5\ns_add_u32 s{S_T0}, s{S_T0}, s{S_H}\ns_lshl_b32 s{S_T0}, s{S_T0}, 12")
        e("v_lshlrev_b32 v1, 4, v0")
        for j in range(3):
            if j == 2:
                e("s_nop 3")
            e(f"v_rcp_f32 v2, v{L_(j)}")
            e("s_nop 0")
            for s in range(4):
                for t in (2 * s, 2 * s + 1):
                    for r in range(4):
                        e(f"v_mul_f32 v{O_(j, t) + r}, v2, v{O_(j, t) + r}")
                q = Q_(j, s)
                e(f"v_cvt_pk_bf16_f32 v{q}, v{O_(j, 2 * s)}, v{O_(j, 2 * s) + 1}")
                e(f"v_cvt_pk_bf16_f32 v{q + 1}, v{O_(j, 2 * s) + 2}, v{O_(j, 2 * s) + 3}")
                e(f"v_cvt_pk_bf16_f32 v{q + 2}, v{O_(j, 2 * s + 1)}, v{O_(j, 2 * s + 1) + 1}")
                e(f"v_cvt_pk_bf16_f32 v{q + 3}, v{O_(j, 2 * s + 1) + 2}, v{O_(j, 2 * s + 1) + 3}")
                e(f"buffer_store_dwordx4 {v(q, 4)}, v1, s[{SRD_WS}:{SRD_WS + 3}], s{S_T0} offen offset:{s * 1024} sc1")
            e(f"s_add_u32 s{S_T0}, s{S_T0}, {32 * 4096}")

    def rare(self):
        e = self.e
        for site, j in enumerate(self.sites):
            e(f"L_stub{site}:\ns_call_b64 s[{S_RET}:{S_RET + 1}], L_rare{j}\ns_branch L_ret{site}")
        for j in range(3):
            s0 = S_(j, 0)
            e(f"L_rare{j}:")
            e("s_nop 7")
            e(f"v_max3_f32 v1, v{s0}, v{s0 + 1}, v{s0 + 2}\nv_max3_f32 v1, v1, v{s0 + 3}, v{s0 + 4}")
            e(f"v_max3_f32 v1, v1, v{s0 + 5}, v{s0 + 6}\nv_max_f32 v1, v1, v{s0 + 7}")
            e("v_mov_b32 v2, v1\ns_nop 1\nv_permlane16_swap_b32 v1, v2\nv_max_f32 v1, v1, v2")
            e("v_mov_b32 v2, v1\ns_nop 1\nv_permlane32_swap_b32 v1, v2\nv_max_f32 v1, v1, v2")
            e("v_add_f32 v1, 0x40e00000, v1")
            e(f"s_cmp_lg_u32 s{S_FIRST}, 0\ns_cbranch_scc1 L_rare{j}_first")
            e("v_max_f32 v1, 0, v1")
            e("v_exp_f32 v2, -v1\ns_nop 0")
            for t in range(8):
                for r in range(4):
                    e(f"v_mul_f32 v{O_(j, t) + r}, v2, v{O_(j, t) + r}")
            for r in range(4):
                e(f"v_mul_f32 v{L_(j) + r}, v2, v{L_(j) + r}")
            e(f"L_rare{j}_first:")
            for r in range(4):
                e(f"v_sub_f32 v{NM(j) + r}, v{NM(j) + r}, v1")
            for k in range(8):
                e(f"v_sub_f32 v{E_ + k}, v{s0 + k}, v1")
            for k in range(8):
                e(f"v_exp_f32 v{E_ + k}, v{E_ + k}")
            e("s_nop 0")
            for k in range(4):
                e(f"v_cvt_pk_bf16_f32 v{P_(j) + k}, v{E_ + 2 * k}, v{E_ + 2 * k + 1}")
            e("s_nop 1")
            e(f"s_setpc_b64 s[{S_RET}:{S_RET + 1}]")

    def projection(self):
        e, o = self.e, self.o
        ACC = lambda u, j: 16 + 12 * u + 4 * j
        OF = lambda k, j: 64 + 12 * (k % 8) + 4 * j
        NREG = 22

        def WOF(k, u):
            k = k % NREG
            return a_(16 * k + 4 * u, 4) if k < 16 else v(160 + 16 * (k - 16) + 4 * u, 4)

        def WOFh(k, u, hh):
            k = k % NREG
            return a_(16 * k + 4 * u + 2 * hh, 2) if k < 16 else v(160 + 16 * (k - 16) + 4 * u + 2 * hh, 2)

        DA, RA, OA = 4, 8, 12
        e("L_proj:")
        self.lq = []
        e("v_lshrrev_b32 v1, 3, v0\nv_mul_u32_u24 v1, 1280, v1\nv_lshrrev_b32 v2, 4, v0\nv_lshlrev_b32 v3, 1, v2")
        e(f"v_and_b32 v15, 7, v0\nv_xor_b32 v3, v3, v15\nv_lshl_add_u32 v{DA}, v3, 4, v1")
        for n in range(1, 4):
            e(f"v_add_u32 v{DA + n}, {n * (10240 - 1024)}, v{DA}")
        e(f"s_mul_i32 s{S_WOFF}, s{S_WAVE}, {1024 * 1280}\ns_lshl_b32 s{S_T0}, s{S_NT}, 7\ns_add_u32 s{S_WOFF}, s{S_WOFF}, s{S_T0}")
        e(f"s_mul_i32 s{S_WLDS}, s{S_WAVE}, {WREG}")
        e(f"s_cmp_ge_u32 s{S_J}, 30\ns_cselect_b32 s{S_WOFF}, 0x7000000, s{S_WOFF}")

        def dma(k):
            e(f"s_add_u32 m0, s{S_WLDS}, {(k % 10) * 4096}\ns_nop 0")
            for n in range(4):
                e(f"buffer_load_dwordx4 v{DA + n}, s[{SRD_WO}:{SRD_WO + 3}], s{S_WOFF} offen offset:{n * 1024} {o['wpol']} lds")
            e(f"s_add_u32 s{S_WOFF}, s{S_WOFF}, {32 * 1280}")

        def trr(k):
            for u in range(4):
                for hh in range(2):
                    self.ds(f"ds_read_b64_tr_b16 {WOFh(k, u, hh)}, v{RA + u} offset:{(k % 10) * 4096 + hh * 2048}")

        for k in range(10):
            dma(k)
        e("s_waitcnt vmcnt(40)\ns_barrier")
        e(f"s_cmp_lg_u32 s{S_WAVE}, 3\ns_cbranch_scc1 L_nosig")
        e("v_mov_b32 v1, 0\nv_mov_b32 v2, 1\ns_mov_b64 exec, 1")
        e(f"buffer_store_dword v2, v1, s[{SRD_WS}:{SRD_WS + 3}], s{S_FLAG} offen sc1")
        e("s_mov_b64 exec, -1")
        e("L_nosig:")
        self.stamp()
        e(f"s_cmp_ge_u32 s{S_J}, 30\ns_cbranch_scc1 L_fin")
        e("v_lshrrev_b32 v1, 2, v0\nv_lshrrev_b32 v2, 1, v1\nv_and_b32 v2, 3, v2\nv_lshlrev_b32 v1, 7, v1")
        e(f"v_and_b32 v3, 3, v0\nv_lshl_add_u32 v1, v3, 3, v1\nv_add_u32 v1, s{S_WLDS}, v1")
        for u in range(4):
            e(f"v_xor_b32 v3, {u}, v2\nv_lshl_add_u32 v{RA + u}, v3, 5, v1")
        e(f"v_lshlrev_b32 v{OA}, 4, v0\nv_add_u32 v{OA + 1}, {32 * 4096}, v{OA}\nv_add_u32 v{OA + 2}, {64 * 4096}, v{OA}")
        for r in range(16, 64):
            e(f"v_mov_b32 v{r}, 0")
        for k in range(NREG):
            e(f"s_waitcnt vmcnt({36 if k == 0 else 32})")
            trr(k)
            if k >= 1:
                e("s_waitcnt lgkmcnt(8)")
                self.lq = self.lq[-8:]
                dma(k + 9)
        self.lwait0()
        dma(NREG + 9)
        self.stamp()
        e(f"s_lshl_b32 s{S_T0}, s{S_B2}, 2\nv_mov_b32 v1, 0\ns_mov_b32 s{S_CNT}, 0")
        e("L_poll0:")
        e(f"buffer_load_dword v2, v1, s[{SRD_DBG}:{SRD_DBG + 3}], s{S_T0} offen sc1")
        e(f"s_add_u32 s{S_CNT}, s{S_CNT}, 1\ns_waitcnt vmcnt(0)\nv_cmp_ne_u32 vcc, 32, v2")
        e(f"s_cmp_ge_u32 s{S_CNT}, 0x40000\ns_cbranch_scc1 L_poll0_end")
        e("s_cbranch_vccz L_poll0_end\ns_sleep 4\ns_branch L_poll0")
        e("L_poll0_end:")
        e(f"v_and_b32 v1, 7, v0\nv_lshlrev_b32 v1, 7, v1")
        e(f"s_lshl_b32 s{S_T0}, s{S_B2}, 12\ns_lshl_b32 s{S_T1}, s{S_WAVE}, 10\ns_add_u32 s{S_T0}, s{S_T0}, s{S_T1}\ns_add_u32 s{S_T0}, s{S_T0}, {FLAG_OFF}")
        e(f"s_mul_i32 s{S_OOFF}, s{S_B2}, 3\ns_add_u32 s{S_OOFF}, s{S_OOFF}, s{S_MT}\ns_mul_i32 s{S_OOFF}, s{S_OOFF}, {3 * 32 * 4096}")
        e(f"s_lshl_b32 s{S_T1}, s{S_WAVE}, 15\ns_add_u32 s{S_OOFF}, s{S_OOFF}, s{S_T1}")
        e("L_poll:")
        e(f"buffer_load_dword v2, v1, s[{SRD_WS}:{SRD_WS + 3}], s{S_T0} offen sc1")
        e(f"s_add_u32 s{S_CNT}, s{S_CNT}, 1\ns_waitcnt vmcnt(0)\nv_cmp_ne_u32 vcc, 1, v2")
        e(f"s_cmp_ge_u32 s{S_CNT}, 0x40000\ns_cbranch_scc1 L_poll_end")
        e("s_cbranch_vccz L_poll_end\ns_sleep 2\ns_branch L_poll")
        e("L_poll_end:")
        self.stamp()

        def ldo(k):
            for j in range(3):
                e(f"buffer_load_dwordx4 {v(OF(k, j), 4)}, v{OA + j}, s[{SRD_WS}:{SRD_WS + 3}], s{S_OOFF} offen offset:{(k & 3) * 1024} sc1")
            if k & 3 == 3:
                e(f"s_add_u32 s{S_OOFF}, s{S_OOFF}, 4096")

        for k in range(8):
            ldo(k)
        if self.o["stamps"]:
            self.lwait0()
        for k in range(32):
            e(f"s_waitcnt vmcnt({3 * (min(8, 32 - k) - 1)})")
            n = 0
            for u in range(4):
                for j in range(3):
                    self.mfma(v(ACC(u, j), 4), WOF(k, u), v(OF(k, j), 4), v(ACC(u, j), 4))
                    if 1 <= k <= 10 and n < 8:
                        uu, hh = n >> 1, n & 1
                        kk = k + NREG - 1
                        self.ds(f"ds_read_b64_tr_b16 {WOFh(kk, uu, hh)}, v{RA + uu} offset:{(kk % 10) * 4096 + hh * 2048}")
                    n += 1
            if k + 8 < 32:
                ldo(k + 8)
        self.stamp()
        e("v_and_b32 v1, 15, v0\nv_lshrrev_b32 v2, 4, v0")
        e(f"v_lshlrev_b32 v3, 8, v1\nv_add_u32 v3, s{S_WLDS}, v3")
        for u in range(4):
            e(f"v_or_b32 v15, {4 * u}, v2\nv_xor_b32 v15, v15, v1\nv_lshl_add_u32 v{RA + u}, v15, 4, v3")
        e(f"s_lshl_b32 s{S_T0}, s{S_WAVE}, 2\nv_add_u32 v2, s{S_T0}, v2\nv_xor_b32 v15, v1, v2\nv_lshlrev_b32 v15, 4, v15")
        e(f"v_lshl_add_u32 v{DA}, v2, 8, v15\nv_add_u32 v{DA + 1}, {2 * WREG}, v{DA}")
        e(f"v_mul_u32_u24 v2, 1280, v2\nv_lshl_add_u32 v{DA + 2}, v1, 3, v2")
        e(f"s_mul_i32 s{S_T0}, s{S_B2}, 3\ns_add_u32 s{S_T0}, s{S_T0}, s{S_MT}\ns_mul_i32 s{S_T0}, s{S_T0}, {48 * 1280}")
        e(f"s_lshl_b32 s{S_T1}, s{S_NT}, 7\ns_add_u32 s{S_T0}, s{S_T0}, s{S_T1}")
        for u in range(4):
            for j in range(3):
                self.ds(f"ds_write_b128 v{RA + u}, {v(ACC(u, j), 4)} offset:{j * 4096}")
        self.lwait0()
        e("s_barrier")
        R = lambda it, w: 64 + 16 * it + 4 * w
        for it in range(3):
            for w in range(4):
                self.ds(f"ds_read_b128 {v(R(it, w), 4)}, v{DA + (w >> 1)} offset:{it * 4096 + (w & 1) * WREG}")
        for it in range(3):
            self.lwait(regs_of(v(R(it, 0), 16)))
            for r in range(4):
                e(f"v_add_f32 v{R(it, 0) + r}, v{R(it, 0) + r}, v{R(it, 1) + r}")
                e(f"v_add_f32 v{R(it, 2) + r}, v{R(it, 2) + r}, v{R(it, 3) + r}")
            for r in range(4):
                e(f"v_add_f32 v{R(it, 0) + r}, v{R(it, 0) + r}, v{R(it, 2) + r}")
            e(f"v_cvt_pk_bf16_f32 v{R(it, 1)}, v{R(it, 0)}, v{R(it, 0) + 1}")
            e(f"v_cvt_pk_bf16_f32 v{R(it, 1) + 1}, v{R(it, 0) + 2}, v{R(it, 0) + 3}")
            e(f"buffer_store_dwordx2 {v(R(it, 1), 2)}, v{DA + 2}, s[{SRD_OUT}:{SRD_OUT + 3}], s{S_T0} offen")
            e(f"s_add_u32 s{S_T0}, s{S_T0}, {16 * 1280}")
        e("L_fin:")
        if self.o["stamps"]:
            e("s_waitcnt vmcnt(0)")
            self.stamp()
            e("s_waitcnt lgkmcnt(0)")
            e(f"s_cmp_lg_u32 s{S_WAVE}, 3\ns_cbranch_scc1 L_end")
            n = self.nstamp
            e(f"s_mul_i32 s{S_T0}, s2, {n * 8}\ns_add_u32 s{S_T0}, s{S_T0}, {STAMP_OFF}\nv_mov_b32 v3, 0")
            for k in range(n):
                e(f"v_mov_b32 v4, s{S_STAMP + 2 * k}\nv_mov_b32 v5, s{S_STAMP + 2 * k + 1}")
                e(f"buffer_store_dwordx2 v[4:5], v3, s[{SRD_WS}:{SRD_WS + 3}], s{S_T0} offen offset:{8 * k}")
        e("L_end:\ns_endpgm")

    def build(self):
        self.prologue()
        self.compute_setup()
        self.qphase()
        self.attention()
        n0 = self.nstamp
        body_a = self.L
        self.L = []
        self.loader()
        loader = self.L
        self.L = []
        self.projection()
        proj = self.L
        self.L = []
        self.rare()
        rare = self.L
        self.L = body_a + proj + loader + rare
        bad = check(self.L)
        assert bad == 0, f"{bad} hazards"
        hdr = open("cdna_kernels/" + NAME + ".s.ref").read().split("; Override launch")[0]
        txt = hdr
        txt += "; @launch grid=(256,1,1) block=(256,1,1) lds=163840\n"
        txt += f""".amdgcn_target "amdgcn-amd-amdhsa--gfx950"
.text
.globl {NAME}_kernel
.p2align 8
.type {NAME}_kernel,@function
{NAME}_kernel:
"""
        for ln in self.L:
            txt += (ln if ln.endswith(":") else "    " + ln) + "\n"
        txt += f"""
.section .rodata,"a"
.p2align 6
.amdhsa_kernel {NAME}_kernel
  .amdhsa_next_free_vgpr 512
  .amdhsa_next_free_sgpr 102
  .amdhsa_accum_offset 256
  .amdhsa_group_segment_fixed_size 0
  .amdhsa_kernarg_size 64
  .amdhsa_user_sgpr_count 2
  .amdhsa_user_sgpr_kernarg_segment_ptr 1
  .amdhsa_system_sgpr_workgroup_id_x 1
  .amdhsa_float_denorm_mode_32 3
.end_amdhsa_kernel
"""
        return txt


def main():
    out = sys.argv[1]
    kw = {}
    for arg in sys.argv[2:]:
        k, val = arg.split("=", 1)
        if val in ("True", "False"):
            val = val == "True"
        elif val.lstrip("-").isdigit() and k not in ("mapping",):
            val = int(val)
        kw[k] = val
    g = Gen(**kw)
    txt = g.build()
    open(out, "w").write(txt)
    print(out, "lines", len(g.L), "stamps", g.nstamp)


if __name__ == "__main__":
    main()
```

```python
import math
import struct
import sys

from hazard import check, regs_of

NAME = "standalone__mha_block_cached__near_ridge"
STAMP_OFF = 0x8000000
LANE_OFF = 0x2000000
FLAG_OFF = 0x1000000

DEFAULTS = dict(
    stamps=False,
    kvpol="nt",
    qpol="",
    wpol="",
    mapping="42",
    rot=True,
    pf_code=True,
    w0=1,
    kvq=8,
    warm=True,
)


def f2u(x):
    return struct.unpack("<I", struct.pack("<f", x))[0]


def v(a, n=1):
    return f"v{a}" if n == 1 else f"v[{a}:{a + n - 1}]"


def a_(a, n=1):
    return f"a{a}" if n == 1 else f"a[{a}:{a + n - 1}]"


def srd_(d):
    return f"s[{d}:{d + 3}]"


S_WAVE = 3
SRD_K, SRD_V, SRD_X, SRD_WQ, SRD_WO, SRD_DBG, SRD_WS, SRD_OUT = 20, 24, 28, 32, 36, 40, 44, 48
S_H, S_B, S_BH = 52, 53, 54
S_T0, S_T1, S_T2 = 55, 56, 57
S_RET = 58
S_CNT, S_SLOT, S_FIRST, S_MASK = 60, 61, 62, 63
S_J, S_B2, S_MT, S_NT = 64, 65, 66, 67
S_FLAG, S_WOFF, S_WEND, S_OOFF = 68, 69, 70, 71
S_C, S_XO, S_WO_, S_KO, S_KS = 72, 73, 74, 75, 76
S_STAMP = 4
SRD_CODE = 96

QSLOT = 34816
QS0 = 163840 - 3 * QSLOT
KRING, VRING = 0, 32768
WA0, WAW = 65536, 24576
WBW = 16384

O_ = lambda j, t: 16 + 32 * j + 4 * t
L_ = lambda j: 112 + 4 * j
NM = lambda j: 124 + 4 * j
S_ = lambda j, u: 136 + 8 * j + 4 * u
E_ = 160
P_ = lambda j: 168 + 4 * j
Q_ = lambda j, s: 180 + 16 * j + 4 * s
AK = lambda s: 228 + s
AV = lambda t: 232 + t
AW = lambda t: 240 + t
AX = lambda s: 248 + s
V_ACC = 250
ONES = 252
DA = 4
RAA = 8
RAB = 12
KF = lambda u, s: 16 * u + 4 * s
VF = lambda t: 32 + 4 * t
WF = lambda t: 4 * t
XF = lambda p, j: 32 + 12 * p + 4 * j


def WOFh(k, u, hh=None):
    if k >= 22:
        k -= 22
    n, o = (4, 4 * u) if hh is None else (2, 4 * u + 2 * hh)
    if k < 12:
        return a_(64 + 16 * k + o, n)
    if k < 16:
        return a_(16 * (k - 12) + o, n)
    return v(160 + 16 * (k - 16) + o, n)


def wslot(k):
    if k < 18:
        return RAA, (k % 6) * 4096
    if k < 22:
        return RAB, (k - 18) * 4096
    if k < 28:
        return RAA, (k - 22) * 4096
    return RAB, (k - 28) * 4096


class Gen:
    def __init__(self, **kw):
        self.o = dict(DEFAULTS)
        self.o.update(kw)
        self.L = []
        self.lq = []
        self.vq = []
        self.stamps = []
        self.strict = False

    def e(self, s):
        for ln in s.split("\n"):
            ln = ln.strip()
            if ln:
                self.L.append(ln)

    def ds(self, text):
        self.e(text)
        dst = text.split(None, 1)[1].split(",")[0]
        self.lq.append(regs_of(dst) if "read" in text.split()[0] else set())

    def lwait(self, regs):
        idx = -1
        for i, d in enumerate(self.lq):
            if d & regs:
                idx = i
        if idx < 0:
            return False
        n = min(len(self.lq) - 1 - idx, 15)
        self.e(f"s_waitcnt lgkmcnt({n})")
        self.lq = self.lq[len(self.lq) - n:] if n else []
        return True

    def lwait0(self):
        self.e("s_waitcnt lgkmcnt(0)")
        self.lq = []

    def vwait(self, tag):
        idx = max(i for i, t in enumerate(self.vq) if t == tag)
        n = min(len(self.vq) - 1 - idx, 63)
        self.e(f"s_waitcnt vmcnt({n})")
        self.vq = self.vq[len(self.vq) - n:] if n else []

    def mfma(self, d, a, b, c):
        w = self.lwait(regs_of(a) | regs_of(b))
        assert not (w and self.strict), f"unplanned wait before mfma {d} {a} {b}"
        self.e(f"v_mfma_f32_16x16x32_bf16 {d}, {a}, {b}, {c}")

    def stream(self, M, fill):
        for k, m in enumerate(M):
            self.mfma(*m)
            for x in fill.get(k, []):
                if isinstance(x, str):
                    self.e(x)
                elif x[0] == "ds":
                    self.ds(x[1])
                elif x[0] == "wait":
                    self.lwait(x[1])
                else:
                    self.lwait0()

    def stamp(self, name):
        if self.o["stamps"]:
            n = len(self.stamps)
            k = 78 + 2 * n if n < 9 else S_STAMP + 2 * (n - 9)
            op = "s_memtime" if self.o.get("clk") else "s_memrealtime"
            self.e(f"{op} s[{k}:{k + 1}]")
            self.stamps.append((name, k))

    def srd(self, d, lo, off, size):
        if off:
            self.e(f"s_add_u32 s{d}, s{lo}, {off}\ns_addc_u32 s{d + 1}, s{lo + 1}, 0")
        else:
            self.e(f"s_mov_b32 s{d}, s{lo}\ns_mov_b32 s{d + 1}, s{lo + 1}")
        self.e(f"s_mov_b32 s{d + 2}, {size}\ns_mov_b32 s{d + 3}, 0x20000")

    def prologue(self):
        e = self.e
        e("s_cmp_ge_u32 s2, 256\ns_cbranch_scc1 L_end")
        e("s_load_dwordx8 s[4:11], s[0:1], 0")
        e("s_load_dwordx8 s[12:19], s[0:1], 32")
        self.stamp("start")
        e("v_lshrrev_b32 v1, 6, v0")
        e("v_and_b32 v0, 63, v0")
        e(f"v_readfirstlane_b32 s{S_WAVE}, v1")
        e(f"s_and_b32 s{S_H}, s2, 7\ns_lshr_b32 s{S_J}, s2, 3\ns_and_b32 s{S_T2}, s{S_J}, 3")
        e(f"s_lshl2_add_u32 s{S_H}, s{S_H}, s{S_T2}")
        e(f"s_lshr_b32 s{S_B}, s2, 5")
        e(f"s_cmp_lg_u32 s{S_WAVE}, 3\ns_cbranch_scc1 L_compute")

    def late_setup(self):
        e = self.e
        nkv = self.o.get("kv_noload")
        e(f"s_lshl_b32 s{S_BH}, s{S_B}, 5\ns_add_u32 s{S_BH}, s{S_BH}, s{S_H}")
        e(f"s_lshl_b32 s{S_T0}, s{S_BH}, 18")
        self.srd(SRD_K, 6, f"s{S_T0}", 0 if nkv else 0x40000)
        self.srd(SRD_V, 8, f"s{S_T0}", 0 if nkv else 0x40000)
        self.srd(SRD_WO, 12, None, 5242880)
        self.srd(SRD_OUT, 14, None, 1474560)
        self.srd(SRD_DBG, 16, None, 256)
        self.srd(SRD_WS, 18, None, 0x10000000)
        if self.o["mapping"] == "81":
            e(f"s_and_b32 s{S_B2}, s2, 7")
            e(f"s_mul_i32 s{S_NT}, s{S_J}, 0x5556\ns_lshr_b32 s{S_NT}, s{S_NT}, 16")
            e(f"s_mul_i32 s{S_MT}, s{S_NT}, 3\ns_sub_u32 s{S_MT}, s{S_J}, s{S_MT}")
        else:
            e(f"s_mul_i32 s{S_NT}, s{S_J}, 0x2AAB\ns_lshr_b32 s{S_NT}, s{S_NT}, 16")
            e(f"s_mul_i32 s{S_MT}, s{S_NT}, 6\ns_sub_u32 s{S_MT}, s{S_J}, s{S_MT}")
            e(f"s_and_b32 s{S_T0}, s2, 1\ns_mul_i32 s{S_T0}, s{S_T0}, 5\ns_add_u32 s{S_NT}, s{S_NT}, s{S_T0}")
            e(f"s_and_b32 s{S_B2}, s2, 6")
            e(f"s_cmp_ge_u32 s{S_MT}, 3\ns_cselect_b32 s{S_T0}, 1, 0\ns_add_u32 s{S_B2}, s{S_B2}, s{S_T0}")
            e(f"s_mul_i32 s{S_T0}, s{S_T0}, 3\ns_sub_u32 s{S_MT}, s{S_MT}, s{S_T0}")
        e(f"s_lshl_b32 s{S_FLAG}, s{S_BH}, 7\ns_add_u32 s{S_FLAG}, s{S_FLAG}, {FLAG_OFF}")
        e("v_lshrrev_b32 v1, 3, v0\nv_mul_u32_u24 v1, 1280, v1\nv_lshrrev_b32 v2, 4, v0\nv_lshlrev_b32 v2, 1, v2")
        e(f"v_and_b32 v3, 7, v0\nv_xor_b32 v3, v3, v2\nv_lshl_add_u32 v{DA}, v3, 4, v1")
        for n in range(1, 4):
            e(f"v_add_u32 v{DA + n}, {n * (10240 - 1024)}, v{DA}")
        e("v_lshrrev_b32 v1, 2, v0\nv_bfe_u32 v2, v0, 3, 2\nv_lshlrev_b32 v1, 7, v1")
        e("v_and_b32 v3, 3, v0\nv_lshl_add_u32 v1, v3, 3, v1")
        e(f"s_mul_i32 s{S_T0}, s{S_WAVE}, {WAW}\ns_add_u32 s{S_T0}, s{S_T0}, {WA0}\ns_mul_i32 s{S_T1}, s{S_WAVE}, {WBW}")
        for u in range(4):
            e(f"v_xor_b32 v3, {u}, v2\nv_lshl_add_u32 v3, v3, 5, v1")
            e(f"v_add_u32 v{RAA + u}, s{S_T0}, v3\nv_add_u32 v{RAB + u}, s{S_T1}, v3")

    def code_srd(self):
        e = self.e
        n = getattr(self, "npc", 0)
        self.npc = n + 1
        e(f"s_getpc_b64 s[{SRD_CODE}:{SRD_CODE + 1}]\nL_pc{n}:")
        e(f"s_sub_u32 s{SRD_CODE}, s{SRD_CODE}, L_pc{n}-{NAME}_kernel\ns_subb_u32 s{SRD_CODE + 1}, s{SRD_CODE + 1}, 0")
        e(f"s_mov_b32 s{SRD_CODE + 2}, L_code_end-{NAME}_kernel\ns_mov_b32 s{SRD_CODE + 3}, 0x20000")

    def trr(self, k):
        ra, off = wslot(k)
        for u in range(4):
            for hh in range(2):
                self.ds(f"ds_read_b64_tr_b16 {WOFh(k, u, hh)}, v{ra + u} offset:{off + hh * 2048}")

    def wdma(self, soff):
        for n in range(4):
            self.e(f"buffer_load_dwordx4 v{DA + n}, {srd_(SRD_WO)}, s{soff} offen offset:{n * 1024} {self.o['wpol']} lds")

    def loader(self):
        e, o = self.e, self.o
        nq = o.get("q_noload")
        WQA, XA, KA, VA = 20, 24, 28, 32
        e("v_lshrrev_b32 v1, 4, v0\nv_and_b32 v2, 15, v0\nv_lshrrev_b32 v3, 3, v0\nv_and_b32 v16, 7, v0")
        for b in range(0, 4, 2):
            e(f"v_or_b32 v17, {(b >> 1) << 2}, v1\nv_lshlrev_b32 v17, 1, v17\nv_xor_b32 v17, v17, v2\nv_lshlrev_b32 v17, 4, v17")
            e("v_lshl_add_u32 v17, v1, 13, v17")
            for bb in (b, b + 1):
                e(f"v_add_u32 v{WQA + bb}, {bb * 4 * 8192 - bb * 1024}, v17")
        e("v_mul_u32_u24 v18, 1280, v3")
        for b in range(2):
            e(f"v_or_b32 v17, {4 * b}, v1\nv_xor_b32 v17, v17, v16\nv_lshl_add_u32 v17, v17, 4, v18")
            for bb in (b, b + 2):
                e(f"v_add_u32 v{XA + bb}, {bb * 8 * 1280 - bb * 1024}, v17")
        if o["rot"]:
            e(f"s_mul_i32 s{S_T0}, s{S_T2}, 5\ns_add_u32 s{S_T0}, s{S_T0}, 1\ns_lshr_b32 s{S_T0}, s{S_T0}, 1")
            e(f"s_add_u32 s{S_C}, s{S_B}, s{S_T0}\ns_cmp_ge_u32 s{S_C}, 10\ns_cselect_b32 s{S_T0}, 10, 0\ns_sub_u32 s{S_C}, s{S_C}, s{S_T0}")
        else:
            e(f"s_mov_b32 s{S_C}, 0")
        e(f"s_mov_b32 s{S_SLOT}, {QS0}\ns_mul_i32 s{S_T1}, s{S_B}, 184320\ns_lshl_b32 s{S_T2}, s{S_H}, 8")
        e("s_waitcnt lgkmcnt(0)")
        self.srd(SRD_WQ, 10, f"s{S_T2}", 0 if nq else f"s{S_T0}")
        self.L.pop(-2)
        e(f"s_sub_u32 s{SRD_WQ + 2}, {0 if nq else 5242880}, {0 if nq else 's' + str(S_T2)}")
        self.srd(SRD_X, 4, f"s{S_T1}", 0 if nq else 184320)
        e(f"s_mov_b32 s{S_CNT}, 0\ns_branch L_ldq_go")

        e("L_qstep:")
        e(f"s_lshl_b32 s{S_WO_}, s{S_C}, 19\ns_lshl_b32 s{S_XO}, s{S_C}, 7")
        for a in range(5):
            if a < 4:
                e(f"s_add_u32 m0, s{S_SLOT}, {a * 4096}")
                e(f"s_add_u32 s{S_T0}, s{S_WO_}, {a * 16 * 8192}")
                for b in range(4):
                    e(f"buffer_load_dwordx4 v{WQA + b}, {srd_(SRD_WQ)}, s{S_T0} offen offset:{b * 1024} {o['qpol']} lds")
            e(f"s_add_u32 m0, s{S_SLOT}, {16384 + a * 4096}")
            e(f"s_add_u32 s{S_T0}, s{S_XO}, {a * 32 * 1280}")
            for b in range(4 if a < 4 else 2):
                e(f"buffer_load_dwordx4 v{XA + b}, {srd_(SRD_X)}, s{S_T0} offen offset:{b * 1024} {o['qpol']} lds")
        e(f"s_add_u32 s{S_C}, s{S_C}, 1\ns_cmp_eq_u32 s{S_C}, 10\ns_cselect_b32 s{S_C}, 0, s{S_C}")
        e(f"s_add_u32 s{S_SLOT}, s{S_SLOT}, {QSLOT}\ns_cmp_eq_u32 s{S_SLOT}, 163840\ns_cselect_b32 s{S_SLOT}, {QS0}, s{S_SLOT}")
        e(f"s_setpc_b64 s[{S_RET}:{S_RET + 1}]")

        def qstep(s):
            e(f"s_call_b64 s[{S_RET}:{S_RET + 1}], L_qstep")
            self.vq += [f"q{s}"] * 34

        def qbar(s):
            self.vwait(f"q{s}")
            if o.get("qsteps"):
                e(f"s_memtime s[{S_RET}:{S_RET + 1}]\ns_waitcnt lgkmcnt(0)\nv_writelane_b32 v40, s{S_RET}, {s + 2}")
            e("s_barrier")
            if o.get("qsteps"):
                e(f"s_memtime s[{S_RET}:{S_RET + 1}]\ns_waitcnt lgkmcnt(0)\nv_writelane_b32 v40, s{S_RET}, {s + 18}")

        def tile(srd, areg, nreg, soff, lds, tag):
            for a in range(2):
                e(f"s_add_u32 m0, s{lds[0]}, {lds[1] + a * 4096}")
                e(f"s_add_u32 s{S_T0}, s{soff[0]}, {soff[1] + a * 4096}")
                for b in range(4):
                    e(f"buffer_load_dwordx4 v{areg + b % nreg}, {srd_(srd)}, s{S_T0} offen offset:{b * 1024} {o['kvpol']} lds")
            self.vq += [tag] * 8

        def K(i):
            tile(SRD_K, KA, 4, (S_KO, i * 8192), (S_KS, KRING + i * 8192), f"k{i}")

        def V(i):
            tile(SRD_V, VA, 2, (S_KO, i * 8192), (S_KS, VRING + i * 8192), f"v{i}")

        e("L_ldq_go:")
        qstep(0)
        for b in range(4):
            e(f"v_or_b32 v17, {4 * b}, v1\nv_xor_b32 v17, v17, v2\nv_lshlrev_b32 v17, 4, v17\nv_lshl_add_u32 v{KA + b}, v1, 8, v17")
        for b in range(2):
            e(f"v_or_b32 v17, {4 * b}, v1\nv_lshlrev_b32 v17, 1, v17\nv_xor_b32 v17, v17, v2\nv_lshlrev_b32 v17, 4, v17\nv_lshl_add_u32 v{VA + b}, v1, 8, v17")
        self.late_setup()
        e(f"s_mov_b32 s{S_KO}, 0\ns_mov_b32 s{S_KS}, 0")
        kv = [lambda: K(0), lambda: K(1), lambda: V(0), lambda: K(2), lambda: V(1), lambda: K(3), lambda: V(2)]
        kvq = o["kvq"]
        nslots = 10 - kvq
        plan = {s: [] for s in range(10)}
        for n, f in enumerate(kv):
            plan[kvq + n * nslots // 7].append(f)
        if o.get("early0"):
            qbar(0)
            qstep(1)
        else:
            qstep(1)
            qbar(0)
        for s in range(10):
            if s:
                qbar(s)
            if s + 2 < 10:
                qstep(s + 2)
            if s == kvq:
                self.stamp("kv_start")
            for f in plan[s]:
                f()
        if o.get("qsteps"):
            e(f"v_subrev_u32 v40, s78, v40\ns_getreg_b32 s{S_T0}, hwreg(HW_REG_XCC_ID)\nv_writelane_b32 v40, s{S_T0}, 0")
            e(f"s_lshl_b32 s{S_T0}, s2, 8\ns_add_u32 s{S_T0}, s{S_T0}, {LANE_OFF}\nv_lshlrev_b32 v41, 2, v0")
            e(f"buffer_store_dword v40, v41, {srd_(SRD_WS)}, s{S_T0} offen")
        self.vwait("k0")
        e("s_barrier")
        self.stamp("b_pre")
        assert self.vq == ["k1"] * 8 + ["v0"] * 8 + ["k2"] * 8 + ["v1"] * 8 + ["k3"] * 8 + ["v2"] * 8
        e("v_mov_b32 v16, 0\nv_mov_b32 v17, 1\ns_mov_b64 exec, 1")
        e(f"buffer_store_dword v16, v16, {srd_(SRD_WS)}, s{S_FLAG} offen sc1")
        e("s_mov_b64 exec, -1")
        w0 = o["w0"]
        t0, t1 = 4 * w0, 4 * w0 + 24
        e(f"s_mov_b32 s{S_CNT}, 0\ns_mov_b32 s{S_KO}, {3 * 8192}\ns_mov_b32 s{S_KS}, 0\ns_mov_b32 s{S_SLOT}, {3 * 8192}")
        e(f"s_cmp_ge_u32 s{S_J}, 30\ns_cselect_b32 s{S_WEND}, 0, {t1}")
        e(f"s_lshl_b32 s{S_WOFF}, s{S_NT}, 7")
        e("L_ldkv:")
        e(f"s_cmp_lt_u32 s{S_CNT}, {t0 + 2}\ns_cbranch_scc1 L_ldkv_w32")
        e(f"s_cmp_gt_u32 s{S_CNT}, s{S_WEND}\ns_cbranch_scc1 L_ldkv_w32")
        e("s_waitcnt vmcnt(56)\ns_branch L_ldkv_bar")
        e("L_ldkv_w32:\ns_waitcnt vmcnt(32)")
        e("L_ldkv_bar:\ns_barrier")
        tile(SRD_K, KA, 4, (S_KO, 8192), (S_KS, KRING), "")
        tile(SRD_V, VA, 2, (S_KO, 0), (S_SLOT, VRING), "")
        e(f"s_add_u32 s{S_KO}, s{S_KO}, 8192")
        e(f"s_mov_b32 s{S_SLOT}, s{S_KS}\ns_add_u32 s{S_KS}, s{S_KS}, 8192\ns_and_b32 s{S_KS}, s{S_KS}, 0x7fff")
        e(f"s_cmp_lt_u32 s{S_CNT}, {t0}\ns_cbranch_scc1 L_ldkv_now")
        e(f"s_cmp_ge_u32 s{S_CNT}, s{S_WEND}\ns_cbranch_scc1 L_ldkv_now")
        e(f"s_and_b32 s{S_T0}, s{S_CNT}, 3\ns_lshr_b32 s{S_T1}, s{S_CNT}, 2\ns_sub_u32 s{S_T1}, s{S_T1}, {w0}")
        e(f"s_mul_i32 s{S_WO_}, s{S_T0}, {1024 * 1280}\ns_mul_i32 s{S_T2}, s{S_T1}, {96 * 1280}")
        e(f"s_add_u32 s{S_WO_}, s{S_WO_}, s{S_T2}\ns_add_u32 s{S_WO_}, s{S_WO_}, s{S_WOFF}")
        e(f"s_mul_i32 s{S_T0}, s{S_T0}, {WAW}\ns_and_b32 s{S_T1}, s{S_T1}, 1\ns_mul_i32 s{S_T1}, s{S_T1}, 12288")
        e(f"s_add_u32 s{S_T1}, s{S_T1}, s{S_T0}")
        for n in range(3):
            e(f"s_add_u32 m0, s{S_T1}, {WA0 + n * 4096}")
            e(f"s_add_u32 s{S_T0}, s{S_WO_}, {n * 32 * 1280}")
            self.wdma(S_T0)
        e("L_ldkv_now:")
        e(f"s_and_b32 s{S_T0}, s{S_CNT}, 3\ns_cmp_eq_u32 s{S_T0}, 3\ns_cbranch_scc1 L_ldkv_x")
        e("L_ldkv_n:")
        e(f"s_add_u32 s{S_CNT}, s{S_CNT}, 1\ns_cmp_lt_u32 s{S_CNT}, 32\ns_cbranch_scc1 L_ldkv")
        self.stamp("b31")
        e("s_waitcnt vmcnt(0)")
        e("s_barrier")
        e(f"s_cmp_ge_u32 s{S_J}, 30\ns_cbranch_scc1 L_proj")
        e(f"s_add_u32 s{S_WO_}, s{S_WOFF}, {18 * 32 * 1280}\ns_mov_b32 s{S_T1}, 0")
        e("L_ldb:")
        for n in range(4):
            e(f"s_add_u32 m0, s{S_T1}, {n * 4096}")
            e(f"s_add_u32 s{S_T0}, s{S_WO_}, {n * 32 * 1280}")
            self.wdma(S_T0)
        e(f"s_add_u32 s{S_WO_}, s{S_WO_}, {1024 * 1280}\ns_add_u32 s{S_T1}, s{S_T1}, {WBW}")
        e(f"s_cmp_lt_u32 s{S_T1}, {4 * WBW}\ns_cbranch_scc1 L_ldb")
        e("s_branch L_proj")

        e("L_ldkv_x:")
        acts = {}
        for g in range(4):
            acts.setdefault(4 * (w0 + g + 1) + 3, []).append(("move", g))
        acts.setdefault(3, []).append(("count",))
        acts.setdefault(19, []).append(("peek",))
        acts.setdefault(23, []).append(("check",))
        if o["warm"]:
            acts.setdefault(27, []).append(("warm",))
        if o["pf_code"]:
            acts.setdefault(27, []).append(("code",))
        for i in sorted(acts):
            e(f"s_cmp_lg_u32 s{S_CNT}, {i}\ns_cbranch_scc1 L_ldkv_x{i}")
            for act in acts[i]:
                if act[0] == "move":
                    self.lq = []
                    for k in range(3 * act[1], 3 * act[1] + 3):
                        self.trr(k)
                    self.lwait0()
                elif act[0] == "count":
                    e(f"s_lshl_b32 s{S_T0}, s{S_B}, 2\ns_mov_b64 exec, 1")
                    e(f"buffer_atomic_add v17, v16, {srd_(SRD_DBG)}, s{S_T0} offen sc1")
                    e("s_mov_b64 exec, -1")
                elif act[0] == "peek":
                    e(f"s_lshl_b32 s{S_T0}, s{S_B2}, 2")
                    e(f"buffer_load_dword v34, v16, {srd_(SRD_DBG)}, s{S_T0} offen sc1")
                elif act[0] == "check":
                    e(f"s_lshl_b32 s{S_T0}, s{S_B2}, 2\ns_mov_b32 s{S_T1}, 0")
                    e("L_chk:")
                    e("v_cmp_gt_u32 vcc, 32, v34")
                    e(f"s_add_u32 s{S_T1}, s{S_T1}, 1\ns_cmp_ge_u32 s{S_T1}, 0x40000\ns_cbranch_scc1 L_chk_end")
                    e("s_cbranch_vccz L_chk_end\ns_sleep 8")
                    e(f"buffer_load_dword v34, v16, {srd_(SRD_DBG)}, s{S_T0} offen sc1")
                    e("s_waitcnt vmcnt(0)\ns_branch L_chk")
                    e("L_chk_end:")
                elif act[0] == "warm":
                    nsh = 6 if o["mapping"] == "42" else 3
                    e(f"s_cmp_ge_u32 s{S_J}, 30\ns_cbranch_scc1 L_warm_end")
                    if nsh == 6:
                        e(f"s_and_b32 s{S_T0}, s{S_B2}, 1\ns_mul_i32 s{S_T0}, s{S_T0}, 3\ns_add_u32 s{S_T0}, s{S_T0}, s{S_MT}")
                    else:
                        e(f"s_mov_b32 s{S_T0}, s{S_MT}")
                    e("v_mul_u32_u24 v18, 1280, v0")
                    e("L_warm:")
                    e(f"s_mul_i32 s{S_T1}, s{S_T0}, 9363\ns_lshr_b32 s{S_T1}, s{S_T1}, 16")
                    e(f"s_mul_i32 s{S_T2}, s{S_T1}, 9\ns_add_u32 s{S_T2}, s{S_T2}, s{S_T0}\ns_add_u32 s{S_T2}, s{S_T2}, 9")
                    e(f"s_mul_i32 s{S_T2}, s{S_T2}, {64 * 1280}\ns_add_u32 s{S_T2}, s{S_T2}, s{S_WOFF}")
                    e(f"buffer_load_dword v19, v18, {srd_(SRD_WO)}, s{S_T2} offen")
                    e(f"s_add_u32 s{S_T0}, s{S_T0}, {nsh}\ns_cmp_lt_u32 s{S_T0}, 28\ns_cbranch_scc1 L_warm")
                    e("L_warm_end:")
                elif act[0] == "code":
                    self.code_srd()
                    e(f"s_and_b32 s{S_T0}, s{S_J}, 3\ns_lshl_b32 s{S_T0}, s{S_T0}, 13\nv_lshlrev_b32 v18, 7, v0")
                    e(f"buffer_load_dword v19, v18, {srd_(SRD_CODE)}, s{S_T0} offen")
            e("s_branch L_ldkv_n")
            e(f"L_ldkv_x{i}:")
        e("s_branch L_ldkv_n")

    def compute_setup(self):
        e = self.e
        e("L_compute:")
        if self.o["pf_code"]:
            self.code_srd()
            e(f"s_and_b32 s{S_T0}, s{S_J}, 3\ns_lshl_b32 s{S_T0}, s{S_T0}, 13\nv_lshlrev_b32 v1, 7, v0")
            e(f"s_cmp_lg_u32 s{S_WAVE}, 0\ns_cbranch_scc1 L_nopf")
            e(f"buffer_load_dword v251, v1, {srd_(SRD_CODE)}, s{S_T0} offen")
            e("L_nopf:")
        e("s_waitcnt lgkmcnt(0)")
        self.late_setup()
        e("v_lshrrev_b32 v1, 4, v0\nv_and_b32 v2, 15, v0\nv_lshrrev_b32 v3, 2, v2\nv_and_b32 v16, 3, v0")
        e("v_and_b32 v17, 1, v1\nv_lshlrev_b32 v18, 1, v17\nv_lshl_or_b32 v17, v17, 2, v3\nv_lshrrev_b32 v19, 1, v1\nv_or_b32 v18, v18, v19")
        e("v_lshl_add_u32 v19, v1, 3, v3\nv_lshlrev_b32 v19, 8, v19\nv_lshl_add_u32 v19, v16, 3, v19")
        e(f"v_add_u32 v19, {QS0}, v19")
        for t in range(8):
            e(f"v_xor_b32 v20, {t}, v17\nv_lshl_add_u32 v{AW(t)}, v20, 5, v19")
        e(f"s_mul_i32 s{S_T0}, s{S_WAVE}, {48 * 128}\ns_add_u32 s{S_T0}, s{S_T0}, {QS0 + 16384}")
        e(f"v_lshlrev_b32 v19, 7, v2\nv_add_u32 v19, s{S_T0}, v19\nv_lshrrev_b32 v21, 1, v2")
        for s in range(2):
            e(f"v_or_b32 v20, {4 * s}, v1\nv_xor_b32 v20, v20, v21\nv_lshl_add_u32 v{AX(s)}, v20, 4, v19")
        e("v_lshlrev_b32 v19, 8, v2")
        for s in range(4):
            e(f"v_or_b32 v20, {4 * s}, v18\nv_xor_b32 v20, v20, v2\nv_lshl_add_u32 v{AK(s)}, v20, 4, v19")
        e(f"v_lshl_add_u32 v19, v1, 2, v3\nv_lshlrev_b32 v19, 8, v19\nv_lshl_add_u32 v19, v16, 3, v19\nv_add_u32 v19, {VRING}, v19")
        for t in range(8):
            e(f"v_xor_b32 v20, {t}, v17\nv_lshl_add_u32 v{AV(t)}, v20, 5, v19")
        for r in range(16, 136, 2):
            e(f"v_mov_b64 v[{r}:{r + 1}], 0")
        e(f"v_mov_b64 v[{P_(2)}:{P_(2) + 1}], 0\nv_mov_b64 v[{P_(2) + 2}:{P_(2) + 3}], 0")
        for r in range(4):
            e(f"v_mov_b32 v{ONES + r}, 0x3f803f80")
        e(f"s_mov_b32 s{S_FIRST}, 1\ns_mov_b32 s{S_MASK}, 0x40004000")

    def qphase(self):
        e = self.e

        def rdw(t, s, hh):
            return ("ds", f"ds_read_b64_tr_b16 {a_(WF(t) + 2 * hh, 2)}, v{AW(t)} offset:{s * 8192 + hh * 1024}")

        def rdx(p, j):
            return ("ds", f"ds_read_b128 {a_(XF(p, j), 4)}, v{AX(p)} offset:{j * 2048}")

        def wf(*ts):
            r = set()
            for t in ts:
                r |= regs_of(a_(WF(t), 4))
            return r

        M, fill = [], {}
        for s in range(2):
            for t in range(8):
                for j in range(3):
                    M.append((v(O_(j, t), 4), a_(WF(t), 4), a_(XF(s, j), 4), v(O_(j, t), 4)))
        add = lambda r: f"v_add_u32 v{r}, s{S_T0}, v{r}"
        F = lambda k: fill.setdefault(k, [])
        for t in range(8):
            if t in (1, 3, 5):
                F(3 * t + 2).append(("wait", wf(t + 1, t + 2)))
            F(3 * t + 2).append(rdw(t, 1, 0))
            F(3 * t + 3).append(rdw(t, 1, 1))
        F(2).insert(0, ("wait", wf(1)))
        for j in range(3):
            F(3 * j + 4).append(rdx(1, j))
        F(23).insert(0, ("wait", wf(0, 1) | regs_of(a_(XF(1, 0), 12))))
        b = 24
        F(b + 1).append(f"s_add_u32 s{S_SLOT}, s{S_SLOT}, 1")
        F(b + 2).append(f"s_cmp_eq_u32 s{S_SLOT}, 3")
        F(b + 3).append(f"s_cselect_b32 s{S_T0}, {(-2 * QSLOT) & 0xffffffff}, s{S_T1}")
        F(b + 4).append(f"s_cselect_b32 s{S_SLOT}, 0, s{S_SLOT}")
        F(b + 4).extend([add(AW(0)), add(AW(1))])
        F(b + 5).extend([("wait0",), "s_barrier"])
        F(b + 6).extend([rdw(0, 0, 0), add(AX(0))])
        F(b + 7).extend([rdw(0, 0, 1), add(AW(2))])
        F(b + 8).extend([rdx(0, 0), rdw(1, 0, 0)])
        F(b + 9).extend([rdx(0, 1), rdw(1, 0, 1)])
        F(b + 10).extend([rdx(0, 2), add(AX(1))])
        F(b + 11).extend([rdw(2, 0, 0), add(AW(3))])
        F(b + 12).extend([rdw(2, 0, 1), add(AW(4))])
        F(b + 13).extend([rdw(3, 0, 0), add(AW(5))])
        F(b + 14).extend([rdw(3, 0, 1), add(AW(6))])
        F(b + 15).extend([rdw(4, 0, 0), add(AW(7))])
        F(b + 16).append(rdw(4, 0, 1))
        F(b + 17).append(rdw(5, 0, 0))
        F(b + 18).append(rdw(5, 0, 1))
        F(b + 19).append(f"s_sub_u32 s{S_CNT}, s{S_CNT}, 1")
        F(b + 20).extend([f"s_cmp_lg_u32 s{S_CNT}, 0", rdw(6, 0, 0)])
        F(b + 21).append(rdw(6, 0, 1))
        F(b + 22).append(("wait", wf(0) | regs_of(a_(XF(0, 0), 12))))
        F(b + 23).extend([rdw(7, 0, 0), rdw(7, 0, 1)])

        e(f"s_mov_b32 s{S_SLOT}, 0\ns_mov_b32 s{S_T1}, {QSLOT}\ns_mov_b32 s{S_CNT}, 10")
        e("s_barrier")
        first = [rdw(0, 0, 0), rdw(0, 0, 1), rdx(0, 0), rdw(1, 0, 0), rdx(0, 1), rdw(1, 0, 1), rdx(0, 2)]
        for t in range(2, 8):
            first += [rdw(t, 0, 0), rdw(t, 0, 1)]
        for x in first:
            self.ds(x[1])
        self.lwait(wf(0) | regs_of(a_(XF(0, 0), 12)))
        entry = [set(x) for x in self.lq]
        e(".p2align 3")
        e("L_q:")
        self.strict = True
        if self.o.get("q_nomfma"):
            for k in range(len(M)):
                M[k] = (v(S_(0, 0), 4), M[k][1], M[k][2], v(S_(0, 0), 4))
        self.stream(M, fill)
        self.strict = False
        assert [set(x) for x in self.lq] == entry, "loop-carried LDS queue differs"
        e("s_cbranch_scc1 L_q")
        self.lwait0()
        for s in range(4):
            for u in range(2):
                self.ds(f"ds_read_b128 {a_(KF(u, s), 4)}, v{AK(s)} offset:{u * 4096}")
        for r in range(32):
            e(f"v_accvgpr_write_b32 a{VF(0) + r}, 0")
        c = math.log2(math.e) / math.sqrt(128.0)
        e(f"s_mov_b32 s{S_RET}, {f2u(c):#x}\ns_mov_b32 s{S_RET + 1}, {f2u(c):#x}\ns_mov_b32 s{S_CNT}, 8")
        for j in range(3):
            for r in range(O_(j, 0), O_(j, 0) + 32, 2):
                e(f"v_pk_mul_f32 v[{r}:{r + 1}], v[{r}:{r + 1}], s[{S_RET}:{S_RET + 1}]")
            for s in range(4):
                self.pack(j, s)
            for r in range(O_(j, 0), O_(j, 0) + 32, 2):
                e(f"v_mov_b64 v[{r}:{r + 1}], 0")
            for s in range(4):
                q = Q_(j, s)
                e(f"v_permlane16_swap_b32 v{q}, v{q + 2}\nv_permlane16_swap_b32 v{q + 1}, v{q + 3}")
            if j == 0:
                e("s_nop 0")
                for m in self.qk(0):
                    self.mfma(*m)

    def pack_ops(self, j, s):
        q = Q_(j, s)
        return [f"v_cvt_pk_bf16_f32 v{q + n}, v{O_(j, 2 * s) + 2 * n}, v{O_(j, 2 * s) + 2 * n + 1}" for n in range(4)]

    def pack(self, j, s):
        for x in self.pack_ops(j, s):
            self.e(x)

    def qk(self, j):
        out = []
        for s in range(4):
            for u in range(2):
                c = v(NM(j), 4) if s == 0 else v(S_(j, u), 4)
                out.append((v(S_(j, u), 4), a_(KF(u, s), 4), v(Q_(j, s), 4), c))
        return out

    def pv(self, j):
        out = [(v(O_(j, t), 4), a_(VF(t), 4), v(P_(j), 4), v(O_(j, t), 4)) for t in range(8)]
        out.append((v(L_(j), 4), v(ONES, 4), v(P_(j), 4), v(L_(j), 4)))
        return out

    def sm_ops(self, j):
        site = len(self.sites)
        self.sites.append(j)
        X = [f"v_exp_f32 v{E_ + k}, v{S_(j, 0) + k}" for k in range(8)]
        C = [f"v_cvt_pk_bf16_f32 v{P_(j) + k}, v{E_ + 2 * k}, v{E_ + 2 * k + 1}" for k in range(4)]
        p = P_(j)
        K = [f"v_or3_b32 v{V_ACC}, v{p}, v{p + 1}, v{p + 2}",
             f"v_bitop3_b32 v{V_ACC}, v{V_ACC}, v{p + 3}, s{S_MASK} bitop3:0xa8",
             f"v_cmp_ne_u32 vcc, s{S_FIRST}, v{V_ACC}",
             f"s_cbranch_vccnz L_stub{site}\nL_ret{site}:"]
        return X, C, K

    def tile(self, a):
        M = self.qk(1) + self.pv(2) + self.qk(2) + self.pv(0) + self.qk(0) + self.pv(1)
        X0, C0, K0 = self.sm_ops(0)
        X1, C1, K1 = self.sm_ops(1)
        X2, C2, K2 = self.sm_ops(2)

        def rv(t, hh):
            return ("ds", f"ds_read_b64_tr_b16 {a_(VF(t) + 2 * hh, 2)}, v{AV(t)} offset:{a * 8192 + hh * 4096}")

        def rk(k):
            u, s = k & 1, k >> 1
            return ("ds", f"ds_read_b128 {a_(KF(u, s), 4)}, v{AK(s)} offset:{((a + 1) & 3) * 8192 + u * 4096}")

        kf = lambda *ks: set().union(*[regs_of(a_(KF(k & 1, k >> 1), 4)) for k in ks])
        fill = {
            0: [X0[3]], 1: [X0[4]], 2: [X0[5]], 3: [X0[6]], 4: [X0[7]],
            5: [C0[0], C0[1]], 6: [C0[2], C0[3]], 7: ([("wait0",)] if a == 0 else []) + [K0[0], K0[1]],
            8: ["s_barrier", rv(0, 0), K0[2]],
            9: [K0[3], rv(0, 1), rv(1, 0)], 10: [rv(1, 1), rv(2, 0)], 11: [X1[0]],
            12: [rv(2, 1), rv(3, 0)], 13: [X1[1]], 14: [rv(3, 1), rv(4, 0)], 15: [X1[2]],
            16: [rv(4, 1), rv(5, 0)], 17: [X1[3]], 18: [rv(5, 1), C1[0]], 19: [rv(6, 0), C1[1]],
            20: [X1[4]], 21: [rv(6, 1), rv(7, 0)], 22: [X1[5]], 23: [rv(7, 1), rk(0)],
            24: [("wait", regs_of(a_(VF(0), 24))), X1[6]], 25: [rk(1), rk(2)], 26: [X1[7]],
            27: [rk(3), C1[2]], 28: [rk(4), C1[3]], 29: [rk(5), K1[0]],
            30: [("wait", regs_of(a_(VF(6), 8))), rk(6), K1[1]], 31: [rk(7), K1[2]], 32: [K1[3]],
            33: [("wait", kf(0, 1, 2, 3))],
            36: [X2[0]], 37: [("wait", kf(4, 5, 6, 7)), X2[1]], 38: [X2[2]], 39: [X2[3]], 40: [X2[4]],
            41: [X2[5]], 42: [X2[6]], 43: [X2[7]], 44: [C2[0], C2[1]], 45: [C2[2], C2[3]],
            46: [K2[0], K2[1]], 47: [K2[2]], 48: [K2[3], X0[0]], 49: [X0[1]], 50: [X0[2]],
        }
        if a == 0:
            fill[49].insert(0, f"s_mov_b32 s{S_FIRST}, 0")
        if a == 3:
            fill[31].insert(0, f"s_sub_u32 s{S_CNT}, s{S_CNT}, 1")
            fill[33] = [f"s_cmp_eq_u32 s{S_CNT}, 0", "s_cbranch_scc1 L_att_tail"] + fill[33]
        self.stream(M, fill)

    def attention(self):
        e, o = self.e, self.o
        self.sites = []
        assert not self.lq
        for k in range(3):
            e(f"v_exp_f32 v{E_ + k}, v{S_(0, 0) + k}")
        e(".p2align 3")
        e("L_att:")
        self.strict = True
        for a in range(4):
            self.tile(a)
        self.strict = False
        assert not self.lq
        w0 = o["w0"]
        e(f"s_cmp_gt_u32 s{S_CNT}, {6 - w0}\ns_cbranch_scc1 L_att")
        for g in range(4):
            e(f"s_cmp_eq_u32 s{S_CNT}, {6 - w0 - g}\ns_cbranch_scc1 L_move{g}")
        e("s_branch L_att")
        for g in range(4):
            e(f"L_move{g}:")
            for k in range(3 * g, 3 * g + 3):
                self.trr(k)
            self.lq = []
            e("s_branch L_att")
        e("L_att_tail:")
        self.lwait0()
        e("s_barrier")
        X2, C2, K2 = self.sm_ops(2)
        fill = {k: [X2[k]] for k in range(8)}
        fill[8] = [C2[0], C2[1], C2[2], C2[3], K2[0], K2[1], K2[2]]
        self.stream(self.pv(1), fill)
        e(f"s_mul_i32 s{S_T0}, s{S_B}, 9\ns_mul_i32 s{S_T1}, s{S_WAVE}, 3\ns_add_u32 s{S_T0}, s{S_T0}, s{S_T1}")
        e(f"s_lshl_b32 s{S_T0}, s{S_T0}, 5\ns_add_u32 s{S_T0}, s{S_T0}, s{S_H}\ns_lshl_b32 s{S_T0}, s{S_T0}, 12")
        e(K2[3])
        e("v_lshlrev_b32 v1, 4, v0")

        def norm(j):
            ops = [f"v_rcp_f32 v2, v{L_(j)}", f"v_rcp_f32 v3, v{L_(j)}", "s_nop 0"]
            for s in range(4):
                for r in range(O_(j, 2 * s), O_(j, 2 * s) + 8, 2):
                    ops.append(f"v_pk_mul_f32 v[{r}:{r + 1}], v[{r}:{r + 1}], v[2:3]")
                ops += self.pack_ops(j, s)
                ops.append(f"buffer_store_dwordx4 {v(Q_(j, s), 4)}, v1, {srd_(SRD_WS)}, s{S_T0} offen offset:{s * 1024} sc1")
            ops.append(f"s_add_u32 s{S_T0}, s{S_T0}, {32 * 4096}")
            return ops

        n0 = norm(0)
        fill = {k: n0[2 * k:2 * k + 2] for k in range(8)}
        fill[8] = n0[16:]
        self.stream(self.pv(2), fill)
        for j in (1, 2):
            for x in norm(j):
                e(x)

    def rare(self):
        e = self.e
        for site, j in enumerate(self.sites):
            e(f"L_stub{site}:\ns_call_b64 s[{S_RET}:{S_RET + 1}], L_rare{j}\ns_branch L_ret{site}")
        for j in range(3):
            s0 = S_(j, 0)
            e(f"L_rare{j}:")
            e("s_nop 7")
            e(f"v_max3_f32 v1, v{s0}, v{s0 + 1}, v{s0 + 2}\nv_max3_f32 v1, v1, v{s0 + 3}, v{s0 + 4}")
            e(f"v_max3_f32 v1, v1, v{s0 + 5}, v{s0 + 6}\nv_max_f32 v1, v1, v{s0 + 7}")
            e("v_mov_b32 v2, v1\ns_nop 1\nv_permlane16_swap_b32 v1, v2\nv_max_f32 v1, v1, v2")
            e("v_mov_b32 v2, v1\ns_nop 1\nv_permlane32_swap_b32 v1, v2\nv_max_f32 v1, v1, v2")
            e("v_add_f32 v1, 0x40e00000, v1")
            e(f"s_cmp_lg_u32 s{S_FIRST}, 0\ns_cbranch_scc1 L_rare{j}_first")
            e("v_max_f32 v1, 0, v1")
            e("v_exp_f32 v2, -v1\nv_exp_f32 v3, -v1\ns_nop 0")
            for r in list(range(O_(j, 0), O_(j, 0) + 32, 2)) + [L_(j), L_(j) + 2]:
                e(f"v_pk_mul_f32 v[{r}:{r + 1}], v[{r}:{r + 1}], v[2:3]")
            e(f"L_rare{j}_first:")
            for r in range(4):
                e(f"v_sub_f32 v{NM(j) + r}, v{NM(j) + r}, v1")
            for k in range(8):
                e(f"v_sub_f32 v{s0 + k}, v{s0 + k}, v1")
            for k in range(8):
                e(f"v_exp_f32 v{s0 + k}, v{s0 + k}")
            e("s_nop 0")
            for k in range(4):
                e(f"v_cvt_pk_bf16_f32 v{P_(j) + k}, v{s0 + 2 * k}, v{s0 + 2 * k + 1}")
            e("s_nop 1")
            e(f"s_setpc_b64 s[{S_RET}:{S_RET + 1}]")

    def projection(self):
        e, o = self.e, self.o
        ACC = lambda u, j: 16 + 12 * u + 4 * j
        OF = lambda k, j: 64 + 12 * (k % 8) + 4 * j
        OA = 1
        e("L_proj:")
        self.lq = []
        for k in range(12, 16):
            self.trr(k)
        e(f"s_mul_i32 s{S_WOFF}, s{S_WAVE}, {1024 * 1280}\ns_lshl_b32 s{S_T0}, s{S_NT}, 7\ns_add_u32 s{S_WOFF}, s{S_WOFF}, s{S_T0}")
        e(f"s_mul_i32 s{S_KO}, s{S_WAVE}, {WAW}\ns_add_u32 s{S_KO}, s{S_KO}, {WA0}\ns_mul_i32 s{S_KS}, s{S_WAVE}, {WBW}")
        e("s_waitcnt vmcnt(0)\ns_barrier")
        e(f"s_cmp_lg_u32 s{S_WAVE}, 3\ns_cbranch_scc1 L_nosig")
        e("s_mov_b64 exec, 1")
        e(f"buffer_store_dword v17, v16, {srd_(SRD_WS)}, s{S_FLAG} offen sc1")
        e("s_mov_b64 exec, -1")
        e("L_nosig:")
        self.stamp("flag")
        e(f"s_cmp_ge_u32 s{S_J}, 30\ns_cbranch_scc1 L_fin")

        def dma(k):
            ra, off = wslot(k)
            e(f"s_add_u32 m0, s{S_KO if ra == RAA else S_KS}, {off}")
            e(f"s_add_u32 s{S_T0}, s{S_WOFF}, {k * 32 * 1280}")
            self.wdma(S_T0)

        self.lwait0()
        for k in range(16, 18):
            self.trr(k)
        for k in range(22, 26):
            dma(k)
        self.lwait0()
        for k in range(18, 20):
            self.trr(k)
        for k in range(26, 28):
            dma(k)
        self.lwait0()
        for k in range(20, 22):
            self.trr(k)
        for k in range(28, 30):
            dma(k)
        self.lwait0()
        for k in range(30, 32):
            dma(k)
        for r in range(16, 64, 2):
            e(f"v_mov_b64 v[{r}:{r + 1}], 0")
        self.stamp("wo_issued")
        e("v_and_b32 v1, 7, v0\nv_lshlrev_b32 v1, 7, v1")
        e(f"s_lshl_b32 s{S_T0}, s{S_B2}, 12\ns_lshl_b32 s{S_T1}, s{S_WAVE}, 10\ns_add_u32 s{S_T0}, s{S_T0}, s{S_T1}\ns_add_u32 s{S_T0}, s{S_T0}, {FLAG_OFF}")
        e(f"s_mul_i32 s{S_OOFF}, s{S_B2}, 3\ns_add_u32 s{S_OOFF}, s{S_OOFF}, s{S_MT}\ns_mul_i32 s{S_OOFF}, s{S_OOFF}, {3 * 32 * 4096}")
        e(f"s_lshl_b32 s{S_T1}, s{S_WAVE}, 15\ns_add_u32 s{S_OOFF}, s{S_OOFF}, s{S_T1}\ns_mov_b32 s{S_CNT}, 0")
        e("L_poll:")
        e(f"buffer_load_dword v2, v1, {srd_(SRD_WS)}, s{S_T0} offen sc1")
        e(f"s_add_u32 s{S_CNT}, s{S_CNT}, 1\ns_waitcnt vmcnt(0)\nv_cmp_ne_u32 vcc, 1, v2")
        e(f"s_cmp_ge_u32 s{S_CNT}, 0x40000\ns_cbranch_scc1 L_poll_end")
        e("s_cbranch_vccz L_poll_end\ns_sleep 2\ns_branch L_poll")
        e("L_poll_end:")
        self.stamp("polled")
        e(f"v_lshlrev_b32 v{OA}, 4, v0\nv_add_u32 v{OA + 1}, {32 * 4096}, v{OA}\nv_add_u32 v{OA + 2}, {64 * 4096}, v{OA}")

        def ldo(k, j):
            r = [f"buffer_load_dwordx4 {v(OF(k, j), 4)}, v{OA + j}, {srd_(SRD_WS)}, s{S_OOFF} offen offset:{(k & 3) * 1024} sc1"]
            if k & 3 == 3 and j == 2:
                r.append(f"s_add_u32 s{S_OOFF}, s{S_OOFF}, 4096")
            return r

        for k in range(8):
            for j in range(3):
                for x in ldo(k, j):
                    e(x)
        if o["stamps"]:
            self.lwait0()
        e("s_waitcnt vmcnt(21)")
        for k in range(32):
            M, fill = [], {}
            for j in range(3):
                for u in range(4):
                    M.append((v(ACC(u, j), 4), WOFh(k, u), v(OF(k, j), 4), v(ACC(u, j), 4)))
                if k + 8 < 32:
                    fill[4 * j + 3] = ldo(k + 8, j)
            if 1 <= k <= 10:
                kk = k + 21
                ra, off = wslot(kk)
                for n, g in enumerate((0, 1, 2, 4, 5, 6, 8, 9)):
                    fill[g] = [("ds", f"ds_read_b64_tr_b16 {WOFh(kk, n >> 1, n & 1)}, v{ra + (n >> 1)} offset:{off + (n & 1) * 2048}")]
            if k == 20:
                fill[0] = [("wait0",)]
            if k < 31:
                fill.setdefault(11, []).append(f"s_waitcnt vmcnt({3 * (min(8, 31 - k) - 1)})")
            self.stream(M, fill)
        self.stamp("mfma_done")
        e("v_and_b32 v1, 15, v0\nv_lshrrev_b32 v2, 4, v0")
        e(f"v_lshlrev_b32 v3, 8, v1\nv_add_u32 v3, s{S_KO}, v3")
        for u in range(4):
            e(f"v_or_b32 v15, {4 * u}, v2\nv_xor_b32 v15, v15, v1\nv_lshl_add_u32 v{RAA + u}, v15, 4, v3")
        for u in range(4):
            for j in range(3):
                self.ds(f"ds_write_b128 v{RAA + u}, {v(ACC(u, j), 4)} offset:{j * 4096}")
        e(f"s_lshl_b32 s{S_T0}, s{S_WAVE}, 2\nv_add_u32 v2, s{S_T0}, v2\nv_xor_b32 v15, v1, v2\nv_lshlrev_b32 v15, 4, v15")
        e(f"v_lshl_add_u32 v15, v2, 8, v15\nv_add_u32 v{DA}, {WA0}, v15\nv_add_u32 v{DA + 1}, {WA0 + 2 * WAW}, v15")
        e(f"v_mul_u32_u24 v2, 1280, v2\nv_lshl_add_u32 v{DA + 2}, v1, 3, v2")
        e(f"s_mul_i32 s{S_T0}, s{S_B2}, 3\ns_add_u32 s{S_T0}, s{S_T0}, s{S_MT}\ns_mul_i32 s{S_T0}, s{S_T0}, {48 * 1280}")
        e(f"s_lshl_b32 s{S_T1}, s{S_NT}, 7\ns_add_u32 s{S_T0}, s{S_T0}, s{S_T1}")
        self.lwait0()
        e("s_barrier")
        R = lambda it, w: 64 + 16 * it + 4 * w
        for it in range(3):
            for w in range(4):
                self.ds(f"ds_read_b128 {v(R(it, w), 4)}, v{DA + (w >> 1)} offset:{it * 4096 + (w & 1) * WAW}")
        for it in range(3):
            self.lwait(regs_of(v(R(it, 0), 16)))
            for r in (0, 2):
                e(f"v_pk_add_f32 {v(R(it, 0) + r, 2)}, {v(R(it, 0) + r, 2)}, {v(R(it, 1) + r, 2)}")
                e(f"v_pk_add_f32 {v(R(it, 2) + r, 2)}, {v(R(it, 2) + r, 2)}, {v(R(it, 3) + r, 2)}")
            for r in (0, 2):
                e(f"v_pk_add_f32 {v(R(it, 0) + r, 2)}, {v(R(it, 0) + r, 2)}, {v(R(it, 2) + r, 2)}")
            e(f"v_cvt_pk_bf16_f32 v{R(it, 1)}, v{R(it, 0)}, v{R(it, 0) + 1}")
            e(f"v_cvt_pk_bf16_f32 v{R(it, 1) + 1}, v{R(it, 0) + 2}, v{R(it, 0) + 3}")
            e(f"buffer_store_dwordx2 {v(R(it, 1), 2)}, v{DA + 2}, {srd_(SRD_OUT)}, s{S_T0} offen")
            e(f"s_add_u32 s{S_T0}, s{S_T0}, {16 * 1280}")
        e("L_fin:")
        if o["stamps"]:
            e("s_waitcnt vmcnt(0)")
            self.stamp("end")
            e("s_waitcnt lgkmcnt(0)")
            e(f"s_cmp_lg_u32 s{S_WAVE}, 3\ns_cbranch_scc1 L_end")
            n = len(self.stamps)
            e(f"s_mul_i32 s{S_T0}, s2, {n * 8}\ns_add_u32 s{S_T0}, s{S_T0}, {STAMP_OFF}\nv_mov_b32 v3, 0")
            for k, (_, r) in enumerate(self.stamps):
                e(f"v_mov_b32 v4, s{r}\nv_mov_b32 v5, s{r + 1}")
                e(f"buffer_store_dwordx2 v[4:5], v3, {srd_(SRD_WS)}, s{S_T0} offen offset:{8 * k}")
        e("L_end:\ns_endpgm")

    def build(self):
        self.prologue()
        self.loader()
        self.lq = []
        self.compute_setup()
        self.qphase()
        self.attention()
        self.projection()
        self.rare()
        self.e("L_code_end:")
        bad = check(self.L)
        assert bad == 0, f"{bad} hazards"
        hdr = open("cdna_kernels/" + NAME + ".s.ref").read().split("; Override launch")[0]
        txt = hdr
        txt += "; @launch grid=(256,1,1) block=(256,1,1) lds=163840\n"
        if self.stamps:
            txt += "; stamps: " + " ".join(n for n, _ in self.stamps) + "\n"
        txt += f""".amdgcn_target "amdgcn-amd-amdhsa--gfx950"
.text
.globl {NAME}_kernel
.p2align 8
.type {NAME}_kernel,@function
{NAME}_kernel:
"""
        for ln in self.L:
            txt += (ln if ln.endswith(":") else "    " + ln) + "\n"
        txt += f"""
.section .rodata,"a"
.p2align 6
.amdhsa_kernel {NAME}_kernel
  .amdhsa_next_free_vgpr 512
  .amdhsa_next_free_sgpr 102
  .amdhsa_accum_offset 256
  .amdhsa_group_segment_fixed_size 0
  .amdhsa_kernarg_size 64
  .amdhsa_user_sgpr_count 2
  .amdhsa_user_sgpr_kernarg_segment_ptr 1
  .amdhsa_system_sgpr_workgroup_id_x 1
  .amdhsa_float_denorm_mode_32 3
.end_amdhsa_kernel
"""
        return txt


def main():
    out = sys.argv[1]
    kw = {}
    for arg in sys.argv[2:]:
        k, val = arg.split("=", 1)
        if val in ("True", "False"):
            val = val == "True"
        elif val.lstrip("-").isdigit() and k not in ("mapping",):
            val = int(val)
        kw[k] = val
    g = Gen(**kw)
    txt = g.build()
    open(out, "w").write(txt)
    print(out, "lines", len(g.L), "stamps", [n for n, _ in g.stamps])


if __name__ == "__main__":
    main()
```

```python
import math
import struct
import sys

from hazard import check, regs_of

NAME = "standalone__mha_block_cached__near_ridge"
STAMP_OFF = 0x8000000
LANE_OFF = 0x2000000
FLAG_OFF = 0x1000000

DEFAULTS = dict(
    stamps=False,
    kvpol="nt",
    qpol="",
    wpol="",
    mapping="42",
    rot=True,
    pf_code=True,
    w0=1,
    kvq=8,
    warm=True,
)


def f2u(x):
    return struct.unpack("<I", struct.pack("<f", x))[0]


def v(a, n=1):
    return f"v{a}" if n == 1 else f"v[{a}:{a + n - 1}]"


def a_(a, n=1):
    return f"a{a}" if n == 1 else f"a[{a}:{a + n - 1}]"


def srd_(d):
    return f"s[{d}:{d + 3}]"


S_WAVE = 3
SRD_K, SRD_V, SRD_X, SRD_WQ, SRD_WO, SRD_DBG, SRD_WS, SRD_OUT = 20, 24, 28, 32, 36, 40, 44, 48
S_H, S_B, S_BH = 52, 53, 54
S_T0, S_T1, S_T2 = 55, 56, 57
S_RET = 58
S_CNT, S_SLOT, S_FIRST, S_MASK = 60, 61, 62, 63
S_J, S_B2, S_MT, S_NT = 64, 65, 66, 67
S_FLAG, S_WOFF, S_WEND, S_OOFF = 68, 69, 70, 71
S_C, S_XO, S_WO_, S_KO, S_KS = 72, 73, 74, 75, 76
S_STAMP = 4
SRD_CODE = 96

QSLOT = 34816
QS0 = 163840 - 3 * QSLOT
KRING, VRING = 0, 32768
WA0, WAW = 65536, 24576
WBW = 16384

O_ = lambda j, t: 16 + 32 * j + 4 * t
L_ = lambda j: 112 + 4 * j
NM = lambda j: 124 + 4 * j
S_ = lambda j, u: 136 + 8 * j + 4 * u
E_ = 160
P_ = lambda j: 168 + 4 * j
Q_ = lambda j, s: 180 + 16 * j + 4 * s
AK = lambda s: 228 + s
AV = lambda t: 232 + t
AW = lambda t: 240 + t
AX = lambda s: 248 + s
V_ACC = 250
ONES = 252
DA = 4
RAA = 8
RAB = 12
KF = lambda u, s: 16 * u + 4 * s
VF = lambda t: 32 + 4 * t
WF = lambda t: 4 * t
XF = lambda p, j: 32 + 12 * p + 4 * j


def WOFh(k, u, hh=None):
    if k >= 22:
        k -= 22
    n, o = (4, 4 * u) if hh is None else (2, 4 * u + 2 * hh)
    if k < 12:
        return a_(64 + 16 * k + o, n)
    if k < 16:
        return a_(16 * (k - 12) + o, n)
    return v(160 + 16 * (k - 16) + o, n)


def wslot(k):
    if k < 18:
        return RAA, (k % 6) * 4096
    if k < 22:
        return RAB, (k - 18) * 4096
    if k < 28:
        return RAA, (k - 22) * 4096
    return RAB, (k - 28) * 4096


class Gen:
    def __init__(self, **kw):
        self.o = dict(DEFAULTS)
        self.o.update(kw)
        self.L = []
        self.lq = []
        self.vq = []
        self.stamps = []
        self.strict = False

    def e(self, s):
        for ln in s.split("\n"):
            ln = ln.strip()
            if ln:
                self.L.append(ln)

    def ds(self, text):
        self.e(text)
        dst = text.split(None, 1)[1].split(",")[0]
        self.lq.append(regs_of(dst) if "read" in text.split()[0] else set())

    def lwait(self, regs):
        idx = -1
        for i, d in enumerate(self.lq):
            if d & regs:
                idx = i
        if idx < 0:
            return False
        n = min(len(self.lq) - 1 - idx, 15)
        self.e(f"s_waitcnt lgkmcnt({n})")
        self.lq = self.lq[len(self.lq) - n:] if n else []
        return True

    def lwait0(self):
        self.e("s_waitcnt lgkmcnt(0)")
        self.lq = []

    def vwait(self, tag):
        if tag not in self.vq:
            return
        idx = max(i for i, t in enumerate(self.vq) if t == tag)
        n = min(len(self.vq) - 1 - idx, 63)
        self.e(f"s_waitcnt vmcnt({n})")
        self.vq = self.vq[len(self.vq) - n:] if n else []

    def mfma(self, d, a, b, c):
        w = self.lwait(regs_of(a) | regs_of(b))
        assert not (w and self.strict), f"unplanned wait before mfma {d} {a} {b}"
        self.e(f"v_mfma_f32_16x16x32_bf16 {d}, {a}, {b}, {c}")

    def stream(self, M, fill):
        for k, m in enumerate(M):
            self.mfma(*m)
            for x in fill.get(k, []):
                if isinstance(x, str):
                    self.e(x)
                elif x[0] == "ds":
                    self.ds(x[1])
                elif x[0] == "wait":
                    self.lwait(x[1])
                else:
                    self.lwait0()

    def stamp(self, name, role="l"):
        if self.o["stamps"] and (role == "a" or role == ("c" if self.o.get("cstamp") else "l")):
            n = len(self.stamps)
            k = 78 + 2 * n if n < 9 else S_STAMP + 2 * (n - 9)
            op = "s_memtime" if self.o.get("clk") else "s_memrealtime"
            self.e(f"{op} s[{k}:{k + 1}]")
            self.stamps.append((name, k))
            if self.o.get("both") and name in self.o["both"].split(","):
                n = len(self.stamps)
                k = 78 + 2 * n if n < 9 else S_STAMP + 2 * (n - 9)
                self.e(f"s_memtime s[{k}:{k + 1}]")
                self.stamps.append((name + "_c", k))

    def srd(self, d, lo, off, size):
        if off:
            self.e(f"s_add_u32 s{d}, s{lo}, {off}\ns_addc_u32 s{d + 1}, s{lo + 1}, 0")
        else:
            self.e(f"s_mov_b32 s{d}, s{lo}\ns_mov_b32 s{d + 1}, s{lo + 1}")
        self.e(f"s_mov_b32 s{d + 2}, {size}\ns_mov_b32 s{d + 3}, 0x20000")

    def prologue(self):
        e = self.e
        e("s_cmp_ge_u32 s2, 256\ns_cbranch_scc1 L_end")
        e("s_load_dwordx8 s[4:11], s[0:1], 0")
        e("s_load_dwordx8 s[12:19], s[0:1], 32")
        self.stamp("start", "a")
        e("v_lshrrev_b32 v1, 6, v0")
        e("v_and_b32 v0, 63, v0")
        e(f"v_readfirstlane_b32 s{S_WAVE}, v1")
        e(f"s_and_b32 s{S_H}, s2, 7\ns_lshr_b32 s{S_J}, s2, 3\ns_and_b32 s{S_T2}, s{S_J}, 3")
        e(f"s_lshl2_add_u32 s{S_H}, s{S_H}, s{S_T2}")
        e(f"s_lshr_b32 s{S_B}, s2, 5")
        e(f"s_cmp_lg_u32 s{S_WAVE}, 3\ns_cbranch_scc1 L_compute")

    def late_setup(self):
        e = self.e
        nkv = self.o.get("kv_noload")
        e(f"s_lshl_b32 s{S_BH}, s{S_B}, 5\ns_add_u32 s{S_BH}, s{S_BH}, s{S_H}")
        e(f"s_lshl_b32 s{S_T0}, s{S_BH}, 18")
        self.srd(SRD_K, 6, f"s{S_T0}", 0 if nkv else 0x40000)
        self.srd(SRD_V, 8, f"s{S_T0}", 0 if nkv else 0x40000)
        self.srd(SRD_WO, 12, None, 5242880)
        self.srd(SRD_OUT, 14, None, 1474560)
        self.srd(SRD_DBG, 16, None, 256)
        self.srd(SRD_WS, 18, None, 0x10000000)
        if self.o["mapping"] == "81":
            e(f"s_and_b32 s{S_B2}, s2, 7")
            e(f"s_mul_i32 s{S_NT}, s{S_J}, 0x5556\ns_lshr_b32 s{S_NT}, s{S_NT}, 16")
            e(f"s_mul_i32 s{S_MT}, s{S_NT}, 3\ns_sub_u32 s{S_MT}, s{S_J}, s{S_MT}")
        else:
            e(f"s_mul_i32 s{S_NT}, s{S_J}, 0x2AAB\ns_lshr_b32 s{S_NT}, s{S_NT}, 16")
            e(f"s_mul_i32 s{S_MT}, s{S_NT}, 6\ns_sub_u32 s{S_MT}, s{S_J}, s{S_MT}")
            e(f"s_and_b32 s{S_T0}, s2, 1\ns_mul_i32 s{S_T0}, s{S_T0}, 5\ns_add_u32 s{S_NT}, s{S_NT}, s{S_T0}")
            e(f"s_and_b32 s{S_B2}, s2, 6")
            e(f"s_cmp_ge_u32 s{S_MT}, 3\ns_cselect_b32 s{S_T0}, 1, 0\ns_add_u32 s{S_B2}, s{S_B2}, s{S_T0}")
            e(f"s_mul_i32 s{S_T0}, s{S_T0}, 3\ns_sub_u32 s{S_MT}, s{S_MT}, s{S_T0}")
        e(f"s_lshl_b32 s{S_FLAG}, s{S_BH}, 7\ns_add_u32 s{S_FLAG}, s{S_FLAG}, {FLAG_OFF}")
        e("v_lshrrev_b32 v1, 3, v0\nv_mul_u32_u24 v1, 1280, v1\nv_lshrrev_b32 v2, 4, v0\nv_lshlrev_b32 v2, 1, v2")
        e(f"v_and_b32 v3, 7, v0\nv_xor_b32 v3, v3, v2\nv_lshl_add_u32 v{DA}, v3, 4, v1")
        for n in range(1, 4):
            e(f"v_add_u32 v{DA + n}, {n * (10240 - 1024)}, v{DA}")
        e("v_lshrrev_b32 v1, 2, v0\nv_bfe_u32 v2, v0, 3, 2\nv_lshlrev_b32 v1, 7, v1")
        e("v_and_b32 v3, 3, v0\nv_lshl_add_u32 v1, v3, 3, v1")
        e(f"s_mul_i32 s{S_T0}, s{S_WAVE}, {WAW}\ns_add_u32 s{S_T0}, s{S_T0}, {WA0}\ns_mul_i32 s{S_T1}, s{S_WAVE}, {WBW}")
        for u in range(4):
            e(f"v_xor_b32 v3, {u}, v2\nv_lshl_add_u32 v3, v3, 5, v1")
            e(f"v_add_u32 v{RAA + u}, s{S_T0}, v3\nv_add_u32 v{RAB + u}, s{S_T1}, v3")

    def code_srd(self):
        e = self.e
        n = getattr(self, "npc", 0)
        self.npc = n + 1
        e(f"s_getpc_b64 s[{SRD_CODE}:{SRD_CODE + 1}]\nL_pc{n}:")
        e(f"s_sub_u32 s{SRD_CODE}, s{SRD_CODE}, L_pc{n}-{NAME}_kernel\ns_subb_u32 s{SRD_CODE + 1}, s{SRD_CODE + 1}, 0")
        e(f"s_mov_b32 s{SRD_CODE + 2}, L_code_end-{NAME}_kernel\ns_mov_b32 s{SRD_CODE + 3}, 0x20000")

    def trr(self, k):
        ra, off = wslot(k)
        for u in range(4):
            for hh in range(2):
                self.ds(f"ds_read_b64_tr_b16 {WOFh(k, u, hh)}, v{ra + u} offset:{off + hh * 2048}")

    def wdma(self, soff):
        for n in range(4):
            self.e(f"buffer_load_dwordx4 v{DA + n}, {srd_(SRD_WO)}, s{soff} offen offset:{n * 1024} {self.o['wpol']} lds")

    def loader(self):
        e, o = self.e, self.o
        nq = o.get("q_noload")
        WQA, XA, KA, VA = 20, 24, 28, 32
        e("v_lshrrev_b32 v1, 4, v0\nv_and_b32 v2, 15, v0\nv_lshrrev_b32 v3, 3, v0\nv_and_b32 v16, 7, v0")
        for b in range(0, 4, 2):
            e(f"v_or_b32 v17, {(b >> 1) << 2}, v1\nv_lshlrev_b32 v17, 1, v17\nv_xor_b32 v17, v17, v2\nv_lshlrev_b32 v17, 4, v17")
            e("v_lshl_add_u32 v17, v1, 13, v17")
            for bb in (b, b + 1):
                e(f"v_add_u32 v{WQA + bb}, {bb * 4 * 8192 - bb * 1024}, v17")
        e("v_mul_u32_u24 v18, 1280, v3")
        for b in range(2):
            e(f"v_or_b32 v17, {4 * b}, v1\nv_xor_b32 v17, v17, v16\nv_lshl_add_u32 v17, v17, 4, v18")
            for bb in (b, b + 2):
                e(f"v_add_u32 v{XA + bb}, {bb * 8 * 1280 - bb * 1024}, v17")
        if o["rot"]:
            e(f"s_mul_i32 s{S_T0}, s{S_T2}, 5\ns_add_u32 s{S_T0}, s{S_T0}, 1\ns_lshr_b32 s{S_T0}, s{S_T0}, 1")
            e(f"s_add_u32 s{S_C}, s{S_B}, s{S_T0}\ns_cmp_ge_u32 s{S_C}, 10\ns_cselect_b32 s{S_T0}, 10, 0\ns_sub_u32 s{S_C}, s{S_C}, s{S_T0}")
        else:
            e(f"s_mov_b32 s{S_C}, 0")
        e(f"s_mov_b32 s{S_SLOT}, {QS0}\ns_mul_i32 s{S_T1}, s{S_B}, 184320\ns_lshl_b32 s{S_T2}, s{S_H}, 8")
        e("s_waitcnt lgkmcnt(0)")
        self.srd(SRD_WQ, 10, f"s{S_T2}", 0 if nq else f"s{S_T0}")
        self.L.pop(-2)
        e(f"s_sub_u32 s{SRD_WQ + 2}, {0 if nq else 5242880}, {0 if nq else 's' + str(S_T2)}")
        self.srd(SRD_X, 4, f"s{S_T1}", 0 if nq else 184320)
        e(f"s_mov_b32 s{S_CNT}, 0\ns_branch L_ldq_go")

        e("L_qstep:")
        e(f"s_lshl_b32 s{S_WO_}, s{S_C}, 19\ns_lshl_b32 s{S_XO}, s{S_C}, 7")
        for a in range(5):
            if a < 4:
                e(f"s_add_u32 m0, s{S_SLOT}, {a * 4096}")
                e(f"s_add_u32 s{S_T0}, s{S_WO_}, {a * 16 * 8192}")
                for b in range(4):
                    e(f"buffer_load_dwordx4 v{WQA + b}, {srd_(SRD_WQ)}, s{S_T0} offen offset:{b * 1024} {o['qpol']} lds")
            e(f"s_add_u32 m0, s{S_SLOT}, {16384 + a * 4096}")
            e(f"s_add_u32 s{S_T0}, s{S_XO}, {a * 32 * 1280}")
            for b in range(4 if a < 4 else 2):
                e(f"buffer_load_dwordx4 v{XA + b}, {srd_(SRD_X)}, s{S_T0} offen offset:{b * 1024} {o['qpol']} lds")
        e(f"s_add_u32 s{S_C}, s{S_C}, 1\ns_cmp_eq_u32 s{S_C}, 10\ns_cselect_b32 s{S_C}, 0, s{S_C}")
        e(f"s_add_u32 s{S_SLOT}, s{S_SLOT}, {QSLOT}\ns_cmp_eq_u32 s{S_SLOT}, 163840\ns_cselect_b32 s{S_SLOT}, {QS0}, s{S_SLOT}")
        e(f"s_setpc_b64 s[{S_RET}:{S_RET + 1}]")

        def qstep(s):
            e(f"s_call_b64 s[{S_RET}:{S_RET + 1}], L_qstep")
            self.vq += [f"q{s}"] * 34

        def qbar(s):
            self.vwait(f"q{s}")
            if o.get("qsteps"):
                e(f"s_memtime s[{S_RET}:{S_RET + 1}]\ns_waitcnt lgkmcnt(0)\nv_writelane_b32 v40, s{S_RET}, {s + 2}")
            e("s_barrier")
            if o.get("qsteps"):
                e(f"s_memtime s[{S_RET}:{S_RET + 1}]\ns_waitcnt lgkmcnt(0)\nv_writelane_b32 v40, s{S_RET}, {s + 18}")

        def tile(srd, areg, nreg, soff, lds, tag):
            for a in range(2):
                e(f"s_add_u32 m0, s{lds[0]}, {lds[1] + a * 4096}")
                e(f"s_add_u32 s{S_T0}, s{soff[0]}, {soff[1] + a * 4096}")
                for b in range(4):
                    e(f"buffer_load_dwordx4 v{areg + b % nreg}, {srd_(srd)}, s{S_T0} offen offset:{b * 1024} {o['kvpol']} lds")
            self.vq += [tag] * 8

        def K(i):
            tile(SRD_K, KA, 4, (S_KO, i * 8192), (S_KS, KRING + i * 8192), f"k{i}")

        def V(i):
            tile(SRD_V, VA, 2, (S_KO, i * 8192), (S_KS, VRING + i * 8192), f"v{i}")

        e("L_ldq_go:")
        qstep(0)
        for b in range(4):
            e(f"v_or_b32 v17, {4 * b}, v1\nv_xor_b32 v17, v17, v2\nv_lshlrev_b32 v17, 4, v17\nv_lshl_add_u32 v{KA + b}, v1, 8, v17")
        for b in range(2):
            e(f"v_or_b32 v17, {4 * b}, v1\nv_lshlrev_b32 v17, 1, v17\nv_xor_b32 v17, v17, v2\nv_lshlrev_b32 v17, 4, v17\nv_lshl_add_u32 v{VA + b}, v1, 8, v17")
        self.late_setup()
        e(f"s_mov_b32 s{S_KO}, 0\ns_mov_b32 s{S_KS}, 0")
        kv = [lambda: K(0), lambda: K(1), lambda: V(0), lambda: K(2), lambda: V(1), lambda: K(3), lambda: V(2)]
        kvq = o["kvq"]
        nslots = 10 - kvq
        plan = {s: [] for s in range(10)}
        for n, f in enumerate(kv):
            plan[kvq + n * nslots // 7].append(f)
        if o.get("early0"):
            qbar(0)
            qstep(1)
        else:
            qstep(1)
            qbar(0)
        for s in range(10):
            if s:
                qbar(s)
            if s + 2 < 10:
                qstep(s + 2)
            if s == kvq:
                self.stamp("kv_start")
            for f in plan[s]:
                f()
        if o.get("qsteps"):
            e(f"v_subrev_u32 v40, s78, v40\ns_getreg_b32 s{S_T0}, hwreg(HW_REG_XCC_ID)\nv_writelane_b32 v40, s{S_T0}, 0")
            e(f"s_lshl_b32 s{S_T0}, s2, 8\ns_add_u32 s{S_T0}, s{S_T0}, {LANE_OFF}\nv_lshlrev_b32 v41, 2, v0")
            e(f"buffer_store_dword v40, v41, {srd_(SRD_WS)}, s{S_T0} offen")
        self.vwait("k0")
        e("s_barrier")
        self.stamp("b_pre")
        full = ["k1"] * 8 + ["v0"] * 8 + ["k2"] * 8 + ["v1"] * 8 + ["k3"] * 8 + ["v2"] * 8
        assert self.vq == full[len(full) - len(self.vq):]
        e("v_mov_b32 v16, 0\nv_mov_b32 v17, 1\ns_mov_b64 exec, 1")
        e(f"buffer_store_dword v16, v16, {srd_(SRD_WS)}, s{S_FLAG} offen sc1")
        e("s_mov_b64 exec, -1")
        w0 = o["w0"]
        t0, t1 = 4 * w0, 4 * w0 + 24
        e(f"s_mov_b32 s{S_CNT}, 0\ns_mov_b32 s{S_KO}, {3 * 8192}\ns_mov_b32 s{S_KS}, 0\ns_mov_b32 s{S_SLOT}, {3 * 8192}")
        e(f"s_cmp_ge_u32 s{S_J}, 30\ns_cselect_b32 s{S_WEND}, 0, {0 if o.get('nowo') else t1}")
        e(f"s_lshl_b32 s{S_WOFF}, s{S_NT}, 7")
        if o.get("nobar"):
            e("s_branch L_ldkv_done")
        e("L_ldkv:")
        e(f"s_cmp_lt_u32 s{S_CNT}, {t0 + 2}\ns_cbranch_scc1 L_ldkv_w32")
        e(f"s_cmp_gt_u32 s{S_CNT}, s{S_WEND}\ns_cbranch_scc1 L_ldkv_w32")
        e("s_waitcnt vmcnt(56)\ns_branch L_ldkv_bar")
        e("L_ldkv_w32:\ns_waitcnt vmcnt(32)")
        e("L_ldkv_bar:\ns_barrier")
        tile(SRD_K, KA, 4, (S_KO, 8192), (S_KS, KRING), "")
        tile(SRD_V, VA, 2, (S_KO, 0), (S_SLOT, VRING), "")
        e(f"s_add_u32 s{S_KO}, s{S_KO}, 8192")
        e(f"s_mov_b32 s{S_SLOT}, s{S_KS}\ns_add_u32 s{S_KS}, s{S_KS}, 8192\ns_and_b32 s{S_KS}, s{S_KS}, 0x7fff")
        e(f"s_cmp_lt_u32 s{S_CNT}, {t0}\ns_cbranch_scc1 L_ldkv_now")
        e(f"s_cmp_ge_u32 s{S_CNT}, s{S_WEND}\ns_cbranch_scc1 L_ldkv_now")
        e(f"s_and_b32 s{S_T0}, s{S_CNT}, 3\ns_lshr_b32 s{S_T1}, s{S_CNT}, 2\ns_sub_u32 s{S_T1}, s{S_T1}, {w0}")
        e(f"s_mul_i32 s{S_WO_}, s{S_T0}, {1024 * 1280}\ns_mul_i32 s{S_T2}, s{S_T1}, {96 * 1280}")
        e(f"s_add_u32 s{S_WO_}, s{S_WO_}, s{S_T2}\ns_add_u32 s{S_WO_}, s{S_WO_}, s{S_WOFF}")
        e(f"s_mul_i32 s{S_T0}, s{S_T0}, {WAW}\ns_and_b32 s{S_T1}, s{S_T1}, 1\ns_mul_i32 s{S_T1}, s{S_T1}, 12288")
        e(f"s_add_u32 s{S_T1}, s{S_T1}, s{S_T0}")
        for n in range(3):
            e(f"s_add_u32 m0, s{S_T1}, {WA0 + n * 4096}")
            e(f"s_add_u32 s{S_T0}, s{S_WO_}, {n * 32 * 1280}")
            self.wdma(S_T0)
        e("L_ldkv_now:")
        e(f"s_and_b32 s{S_T0}, s{S_CNT}, 3\ns_cmp_eq_u32 s{S_T0}, 3\ns_cbranch_scc1 L_ldkv_x")
        e("L_ldkv_n:")
        e(f"s_add_u32 s{S_CNT}, s{S_CNT}, 1\ns_cmp_lt_u32 s{S_CNT}, 32\ns_cbranch_scc1 L_ldkv")
        e("L_ldkv_done:")
        self.stamp("b31")
        e("s_waitcnt vmcnt(0)")
        e("s_barrier")
        e(f"s_cmp_ge_u32 s{S_J}, 30\ns_cbranch_scc1 L_proj")
        e(f"s_add_u32 s{S_WO_}, s{S_WOFF}, {18 * 32 * 1280}\ns_mov_b32 s{S_T1}, 0")
        e("L_ldb:")
        for n in range(4):
            e(f"s_add_u32 m0, s{S_T1}, {n * 4096}")
            e(f"s_add_u32 s{S_T0}, s{S_WO_}, {n * 32 * 1280}")
            self.wdma(S_T0)
        e(f"s_add_u32 s{S_WO_}, s{S_WO_}, {1024 * 1280}\ns_add_u32 s{S_T1}, s{S_T1}, {WBW}")
        e(f"s_cmp_lt_u32 s{S_T1}, {4 * WBW}\ns_cbranch_scc1 L_ldb")
        e("s_branch L_proj")

        e("L_ldkv_x:")
        acts = {}
        for g in range(4):
            acts.setdefault(4 * (w0 + g + 1) + 3, []).append(("move", g))
        acts.setdefault(3, []).append(("count",))
        acts.setdefault(19, []).append(("peek",))
        acts.setdefault(23, []).append(("check",))
        if o["warm"]:
            acts.setdefault(27, []).append(("warm",))
        if o["pf_code"]:
            acts.setdefault(27, []).append(("code",))
        for i in sorted(acts):
            e(f"s_cmp_lg_u32 s{S_CNT}, {i}\ns_cbranch_scc1 L_ldkv_x{i}")
            for act in acts[i]:
                if act[0] == "move":
                    self.lq = []
                    for k in range(3 * act[1], 3 * act[1] + 3):
                        self.trr(k)
                    self.lwait0()
                elif act[0] == "count":
                    e(f"s_lshl_b32 s{S_T0}, s{S_B}, 2\ns_mov_b64 exec, 1")
                    e(f"buffer_atomic_add v17, v16, {srd_(SRD_DBG)}, s{S_T0} offen sc1")
                    e("s_mov_b64 exec, -1")
                elif act[0] == "peek":
                    e(f"s_lshl_b32 s{S_T0}, s{S_B2}, 2")
                    e(f"buffer_load_dword v34, v16, {srd_(SRD_DBG)}, s{S_T0} offen sc1")
                elif act[0] == "check":
                    e(f"s_lshl_b32 s{S_T0}, s{S_B2}, 2\ns_mov_b32 s{S_T1}, 0")
                    e("L_chk:")
                    e("v_cmp_gt_u32 vcc, 32, v34")
                    e(f"s_add_u32 s{S_T1}, s{S_T1}, 1\ns_cmp_ge_u32 s{S_T1}, 0x40000\ns_cbranch_scc1 L_chk_end")
                    e("s_cbranch_vccz L_chk_end\ns_sleep 8")
                    e(f"buffer_load_dword v34, v16, {srd_(SRD_DBG)}, s{S_T0} offen sc1")
                    e("s_waitcnt vmcnt(0)\ns_branch L_chk")
                    e("L_chk_end:")
                elif act[0] == "warm":
                    nsh = 6 if o["mapping"] == "42" else 3
                    e(f"s_cmp_ge_u32 s{S_J}, 30\ns_cbranch_scc1 L_warm_end")
                    if nsh == 6:
                        e(f"s_and_b32 s{S_T0}, s{S_B2}, 1\ns_mul_i32 s{S_T0}, s{S_T0}, 3\ns_add_u32 s{S_T0}, s{S_T0}, s{S_MT}")
                    else:
                        e(f"s_mov_b32 s{S_T0}, s{S_MT}")
                    e("v_mul_u32_u24 v18, 1280, v0")
                    e("L_warm:")
                    e(f"s_mul_i32 s{S_T1}, s{S_T0}, 9363\ns_lshr_b32 s{S_T1}, s{S_T1}, 16")
                    e(f"s_mul_i32 s{S_T2}, s{S_T1}, 9\ns_add_u32 s{S_T2}, s{S_T2}, s{S_T0}\ns_add_u32 s{S_T2}, s{S_T2}, 9")
                    e(f"s_mul_i32 s{S_T2}, s{S_T2}, {64 * 1280}\ns_add_u32 s{S_T2}, s{S_T2}, s{S_WOFF}")
                    e(f"buffer_load_dword v19, v18, {srd_(SRD_WO)}, s{S_T2} offen")
                    e(f"s_add_u32 s{S_T0}, s{S_T0}, {nsh}\ns_cmp_lt_u32 s{S_T0}, 28\ns_cbranch_scc1 L_warm")
                    e("L_warm_end:")
                elif act[0] == "code":
                    self.code_srd()
                    e(f"s_and_b32 s{S_T0}, s{S_J}, 3\ns_lshl_b32 s{S_T0}, s{S_T0}, 13\nv_lshlrev_b32 v18, 7, v0")
                    e(f"buffer_load_dword v19, v18, {srd_(SRD_CODE)}, s{S_T0} offen")
            e("s_branch L_ldkv_n")
            e(f"L_ldkv_x{i}:")
        e("s_branch L_ldkv_n")

    def compute_setup(self):
        e = self.e
        e("L_compute:")
        if self.o["pf_code"]:
            self.code_srd()
            e(f"s_and_b32 s{S_T0}, s{S_J}, 3\ns_lshl_b32 s{S_T0}, s{S_T0}, 13\nv_lshlrev_b32 v1, 7, v0")
            e(f"s_cmp_lg_u32 s{S_WAVE}, 0\ns_cbranch_scc1 L_nopf")
            e(f"buffer_load_dword v251, v1, {srd_(SRD_CODE)}, s{S_T0} offen")
            e("L_nopf:")
        e("s_waitcnt lgkmcnt(0)")
        self.late_setup()
        e("v_lshrrev_b32 v1, 4, v0\nv_and_b32 v2, 15, v0\nv_lshrrev_b32 v3, 2, v2\nv_and_b32 v16, 3, v0")
        e("v_and_b32 v17, 1, v1\nv_lshlrev_b32 v18, 1, v17\nv_lshl_or_b32 v17, v17, 2, v3\nv_lshrrev_b32 v19, 1, v1\nv_or_b32 v18, v18, v19")
        e("v_lshl_add_u32 v19, v1, 3, v3\nv_lshlrev_b32 v19, 8, v19\nv_lshl_add_u32 v19, v16, 3, v19")
        e(f"v_add_u32 v19, {QS0}, v19")
        for t in range(8):
            e(f"v_xor_b32 v20, {t}, v17\nv_lshl_add_u32 v{AW(t)}, v20, 5, v19")
        e(f"s_mul_i32 s{S_T0}, s{S_WAVE}, {48 * 128}\ns_add_u32 s{S_T0}, s{S_T0}, {QS0 + 16384}")
        e(f"v_lshlrev_b32 v19, 7, v2\nv_add_u32 v19, s{S_T0}, v19\nv_lshrrev_b32 v21, 1, v2")
        for s in range(2):
            e(f"v_or_b32 v20, {4 * s}, v1\nv_xor_b32 v20, v20, v21\nv_lshl_add_u32 v{AX(s)}, v20, 4, v19")
        e("v_lshlrev_b32 v19, 8, v2")
        for s in range(4):
            e(f"v_or_b32 v20, {4 * s}, v18\nv_xor_b32 v20, v20, v2\nv_lshl_add_u32 v{AK(s)}, v20, 4, v19")
        e(f"v_lshl_add_u32 v19, v1, 2, v3\nv_lshlrev_b32 v19, 8, v19\nv_lshl_add_u32 v19, v16, 3, v19\nv_add_u32 v19, {VRING}, v19")
        for t in range(8):
            e(f"v_xor_b32 v20, {t}, v17\nv_lshl_add_u32 v{AV(t)}, v20, 5, v19")
        for r in range(16, 136, 2):
            e(f"v_mov_b64 v[{r}:{r + 1}], 0")
        e(f"v_mov_b64 v[{P_(2)}:{P_(2) + 1}], 0\nv_mov_b64 v[{P_(2) + 2}:{P_(2) + 3}], 0")
        for r in range(4):
            e(f"v_mov_b32 v{ONES + r}, 0x3f803f80")
        e(f"s_mov_b32 s{S_FIRST}, 1\ns_mov_b32 s{S_MASK}, 0x40004000")

    def qphase(self):
        e = self.e

        def rdw(t, s, hh):
            return ("ds", f"ds_read_b64_tr_b16 {a_(WF(t) + 2 * hh, 2)}, v{AW(t)} offset:{s * 8192 + hh * 1024}")

        def rdx(p, j):
            return ("ds", f"ds_read_b128 {a_(XF(p, j), 4)}, v{AX(p)} offset:{j * 2048}")

        def wf(*ts):
            r = set()
            for t in ts:
                r |= regs_of(a_(WF(t), 4))
            return r

        M, fill = [], {}
        for s in range(2):
            for t in range(8):
                for j in range(3):
                    M.append((v(O_(j, t), 4), a_(WF(t), 4), a_(XF(s, j), 4), v(O_(j, t), 4)))
        add = lambda r: f"v_add_u32 v{r}, s{S_T0}, v{r}"
        F = lambda k: fill.setdefault(k, [])
        for t in range(8):
            if t in (1, 3, 5):
                F(3 * t + 2).append(("wait", wf(t + 1, t + 2)))
            F(3 * t + 2).append(rdw(t, 1, 0))
            F(3 * t + 3).append(rdw(t, 1, 1))
        F(2).insert(0, ("wait", wf(1)))
        for j in range(3):
            F(3 * j + 4).append(rdx(1, j))
        F(23).insert(0, ("wait", wf(0, 1) | regs_of(a_(XF(1, 0), 12))))
        b = 24
        F(b + 1).append(f"s_add_u32 s{S_SLOT}, s{S_SLOT}, 1")
        F(b + 2).append(f"s_cmp_eq_u32 s{S_SLOT}, 3")
        F(b + 3).append(f"s_cselect_b32 s{S_T0}, {(-2 * QSLOT) & 0xffffffff}, s{S_T1}")
        F(b + 4).append(f"s_cselect_b32 s{S_SLOT}, 0, s{S_SLOT}")
        F(b + 4).extend([add(AW(0)), add(AW(1))])
        F(b + 5).extend([("wait0",), "s_barrier"])
        F(b + 6).extend([rdw(0, 0, 0), add(AX(0))])
        F(b + 7).extend([rdw(0, 0, 1), add(AW(2))])
        F(b + 8).extend([rdx(0, 0), rdw(1, 0, 0)])
        F(b + 9).extend([rdx(0, 1), rdw(1, 0, 1)])
        F(b + 10).extend([rdx(0, 2), add(AX(1))])
        F(b + 11).extend([rdw(2, 0, 0), add(AW(3))])
        F(b + 12).extend([rdw(2, 0, 1), add(AW(4))])
        F(b + 13).extend([rdw(3, 0, 0), add(AW(5))])
        F(b + 14).extend([rdw(3, 0, 1), add(AW(6))])
        F(b + 15).extend([rdw(4, 0, 0), add(AW(7))])
        F(b + 16).append(rdw(4, 0, 1))
        F(b + 17).append(rdw(5, 0, 0))
        F(b + 18).append(rdw(5, 0, 1))
        F(b + 19).append(f"s_sub_u32 s{S_CNT}, s{S_CNT}, 1")
        F(b + 20).extend([f"s_cmp_lg_u32 s{S_CNT}, 0", rdw(6, 0, 0)])
        F(b + 21).append(rdw(6, 0, 1))
        F(b + 22).append(("wait", wf(0) | regs_of(a_(XF(0, 0), 12))))
        F(b + 23).extend([rdw(7, 0, 0), rdw(7, 0, 1)])

        e(f"s_mov_b32 s{S_SLOT}, 0\ns_mov_b32 s{S_T1}, {QSLOT}\ns_mov_b32 s{S_CNT}, 10")
        e("s_barrier")
        first = [rdw(0, 0, 0), rdw(0, 0, 1), rdx(0, 0), rdw(1, 0, 0), rdx(0, 1), rdw(1, 0, 1), rdx(0, 2)]
        for t in range(2, 8):
            first += [rdw(t, 0, 0), rdw(t, 0, 1)]
        for x in first:
            self.ds(x[1])
        self.lwait(wf(0) | regs_of(a_(XF(0, 0), 12)))
        entry = [set(x) for x in self.lq]
        e(".p2align 3")
        e("L_q:")
        self.strict = True
        if self.o.get("q_nomfma"):
            for k in range(len(M)):
                M[k] = (v(S_(0, 0), 4), M[k][1], M[k][2], v(S_(0, 0), 4))
        self.stream(M, fill)
        self.strict = False
        assert [set(x) for x in self.lq] == entry, "loop-carried LDS queue differs"
        e("s_cbranch_scc1 L_q")
        self.lwait0()
        for s in range(4):
            for u in range(2):
                self.ds(f"ds_read_b128 {a_(KF(u, s), 4)}, v{AK(s)} offset:{u * 4096}")
        for r in range(32):
            e(f"v_accvgpr_write_b32 a{VF(0) + r}, 0")
        c = math.log2(math.e) / math.sqrt(128.0)
        e(f"s_mov_b32 s{S_RET}, {f2u(c):#x}\ns_mov_b32 s{S_RET + 1}, {f2u(c):#x}\ns_mov_b32 s{S_CNT}, 8")
        for j in range(3):
            for r in range(O_(j, 0), O_(j, 0) + 32, 2):
                e(f"v_pk_mul_f32 v[{r}:{r + 1}], v[{r}:{r + 1}], s[{S_RET}:{S_RET + 1}]")
            for s in range(4):
                self.pack(j, s)
            for r in range(O_(j, 0), O_(j, 0) + 32, 2):
                e(f"v_mov_b64 v[{r}:{r + 1}], 0")
            for s in range(4):
                q = Q_(j, s)
                e(f"v_permlane16_swap_b32 v{q}, v{q + 2}\nv_permlane16_swap_b32 v{q + 1}, v{q + 3}")
            if j == 0:
                e("s_nop 0")
                for m in self.qk(0):
                    self.mfma(*m)

    def pack_ops(self, j, s):
        q = Q_(j, s)
        return [f"v_cvt_pk_bf16_f32 v{q + n}, v{O_(j, 2 * s) + 2 * n}, v{O_(j, 2 * s) + 2 * n + 1}" for n in range(4)]

    def pack(self, j, s):
        for x in self.pack_ops(j, s):
            self.e(x)

    def qk(self, j):
        out = []
        for s in range(4):
            for u in range(2):
                c = v(NM(j), 4) if s == 0 else v(S_(j, u), 4)
                out.append((v(S_(j, u), 4), a_(KF(u, s), 4), v(Q_(j, s), 4), c))
        return out

    def pv(self, j):
        out = [(v(O_(j, t), 4), a_(VF(t), 4), v(P_(j), 4), v(O_(j, t), 4)) for t in range(8)]
        out.append((v(L_(j), 4), v(ONES, 4), v(P_(j), 4), v(L_(j), 4)))
        return out

    def sm_ops(self, j):
        site = len(self.sites)
        self.sites.append(j)
        X = [f"v_exp_f32 v{E_ + k}, v{S_(j, 0) + k}" for k in range(8)]
        C = [f"v_cvt_pk_bf16_f32 v{P_(j) + k}, v{E_ + 2 * k}, v{E_ + 2 * k + 1}" for k in range(4)]
        p = P_(j)
        K = [f"v_or3_b32 v{V_ACC}, v{p}, v{p + 1}, v{p + 2}",
             f"v_bitop3_b32 v{V_ACC}, v{V_ACC}, v{p + 3}, s{S_MASK} bitop3:0xa8",
             f"v_cmp_ne_u32 vcc, s{S_FIRST}, v{V_ACC}",
             f"s_cbranch_vccnz L_stub{site}\nL_ret{site}:"]
        return X, C, K

    def tile(self, a):
        M = self.qk(1) + self.pv(2) + self.qk(2) + self.pv(0) + self.qk(0) + self.pv(1)
        X0, C0, K0 = self.sm_ops(0)
        X1, C1, K1 = self.sm_ops(1)
        X2, C2, K2 = self.sm_ops(2)

        def rv(t, hh):
            return ("ds", f"ds_read_b64_tr_b16 {a_(VF(t) + 2 * hh, 2)}, v{AV(t)} offset:{a * 8192 + hh * 4096}")

        def rk(k):
            u, s = k & 1, k >> 1
            return ("ds", f"ds_read_b128 {a_(KF(u, s), 4)}, v{AK(s)} offset:{((a + 1) & 3) * 8192 + u * 4096}")

        kf = lambda *ks: set().union(*[regs_of(a_(KF(k & 1, k >> 1), 4)) for k in ks])
        fill = {
            0: [X0[3]], 1: [X0[4]], 2: [X0[5]], 3: [X0[6]], 4: [X0[7]],
            5: [C0[0], C0[1]], 6: [C0[2], C0[3]], 7: ([("wait0",)] if a == 0 else []) + [K0[0], K0[1]],
            8: ["s_nop 0" if self.o.get("nobar") else "s_barrier", rv(0, 0), K0[2]],
            9: [K0[3], rv(0, 1), rv(1, 0)], 10: [rv(1, 1), rv(2, 0)], 11: [X1[0]],
            12: [rv(2, 1), rv(3, 0)], 13: [X1[1]], 14: [rv(3, 1), rv(4, 0)], 15: [X1[2]],
            16: [rv(4, 1), rv(5, 0)], 17: [X1[3]], 18: [rv(5, 1), C1[0]], 19: [rv(6, 0), C1[1]],
            20: [X1[4]], 21: [rv(6, 1), rv(7, 0)], 22: [X1[5]], 23: [rv(7, 1), rk(0)],
            24: [("wait", regs_of(a_(VF(0), 24))), X1[6]], 25: [rk(1), rk(2)], 26: [X1[7]],
            27: [rk(3), C1[2]], 28: [rk(4), C1[3]], 29: [rk(5), K1[0]],
            30: [("wait", regs_of(a_(VF(6), 8))), rk(6), K1[1]], 31: [rk(7), K1[2]], 32: [K1[3]],
            33: [("wait", kf(0, 1, 2, 3))],
            36: [X2[0]], 37: [("wait", kf(4, 5, 6, 7)), X2[1]], 38: [X2[2]], 39: [X2[3]], 40: [X2[4]],
            41: [X2[5]], 42: [X2[6]], 43: [X2[7]], 44: [C2[0], C2[1]], 45: [C2[2], C2[3]],
            46: [K2[0], K2[1]], 47: [K2[2]], 48: [K2[3], X0[0]], 49: [X0[1]], 50: [X0[2]],
        }
        drop = self.o.get("drop", "")
        for k in fill:
            def keep(x):
                t = x if isinstance(x, str) else x[0] + (x[1] if x[0] == "ds" else "")
                if "e" in drop and t.startswith("v_exp"):
                    return False
                if "d" in drop and t.startswith("ds"):
                    return False
                if "b" in drop and t.startswith("s_cbranch_vcc"):
                    self.e(t.split("\n")[1])
                    return False
                if "c" in drop and t.startswith("v_c"):
                    return False
                return True
            fill[k] = [x for x in fill[k] if keep(x)]
        if a == 0:
            fill[49].insert(0, f"s_mov_b32 s{S_FIRST}, 0")
        if a == 3:
            fill[31].insert(0, f"s_sub_u32 s{S_CNT}, s{S_CNT}, 1")
            fill[33] = [f"s_cmp_eq_u32 s{S_CNT}, 0", "s_cbranch_scc1 L_att_tail"] + fill[33]
        self.stream(M, fill)

    def attention(self):
        e, o = self.e, self.o
        self.sites = []
        assert not self.lq
        for k in range(3):
            e(f"v_exp_f32 v{E_ + k}, v{S_(0, 0) + k}")
        self.stamp("att0", "c")
        if o.get("cstamp"):
            self.lwait0()
        e(".p2align 3")
        e("L_att:")
        self.strict = True
        for a in range(4):
            self.tile(a)
        self.strict = False
        assert not self.lq
        w0 = o["w0"]
        e(f"s_cmp_gt_u32 s{S_CNT}, {6 - w0}\ns_cbranch_scc1 L_att")
        for g in range(4):
            e(f"s_cmp_eq_u32 s{S_CNT}, {6 - w0 - g}\ns_cbranch_scc1 L_move{g}")
        e("s_branch L_att")
        for g in range(4):
            e(f"L_move{g}:")
            for k in range(3 * g, 3 * g + 3):
                self.trr(k)
            self.lq = []
            e("s_branch L_att")
        e("L_att_tail:")
        self.stamp("att1", "c")
        self.lwait0()
        e("s_barrier")
        X2, C2, K2 = self.sm_ops(2)
        fill = {k: [X2[k]] for k in range(8)}
        fill[8] = [C2[0], C2[1], C2[2], C2[3], K2[0], K2[1], K2[2]]
        self.stream(self.pv(1), fill)
        e(f"s_mul_i32 s{S_T0}, s{S_B}, 9\ns_mul_i32 s{S_T1}, s{S_WAVE}, 3\ns_add_u32 s{S_T0}, s{S_T0}, s{S_T1}")
        e(f"s_lshl_b32 s{S_T0}, s{S_T0}, 5\ns_add_u32 s{S_T0}, s{S_T0}, s{S_H}\ns_lshl_b32 s{S_T0}, s{S_T0}, 12")
        e(K2[3])
        e("v_lshlrev_b32 v1, 4, v0")

        def norm(j):
            ops = [f"v_rcp_f32 v2, v{L_(j)}", f"v_rcp_f32 v3, v{L_(j)}", "s_nop 0"]
            for s in range(4):
                for r in range(O_(j, 2 * s), O_(j, 2 * s) + 8, 2):
                    ops.append(f"v_pk_mul_f32 v[{r}:{r + 1}], v[{r}:{r + 1}], v[2:3]")
                ops += self.pack_ops(j, s)
                ops.append(f"buffer_store_dwordx4 {v(Q_(j, s), 4)}, v1, {srd_(SRD_WS)}, s{S_T0} offen offset:{s * 1024} sc1")
            ops.append(f"s_add_u32 s{S_T0}, s{S_T0}, {32 * 4096}")
            return ops

        n0 = norm(0)
        fill = {k: n0[2 * k:2 * k + 2] for k in range(8)}
        fill[8] = n0[16:]
        self.stream(self.pv(2), fill)
        for j in (1, 2):
            for x in norm(j):
                e(x)

    def rare(self):
        e = self.e
        for site, j in enumerate(self.sites):
            e(f"L_stub{site}:\ns_call_b64 s[{S_RET}:{S_RET + 1}], L_rare{j}\ns_branch L_ret{site}")
        for j in range(3):
            s0 = S_(j, 0)
            e(f"L_rare{j}:")
            e("s_nop 7")
            e(f"v_max3_f32 v1, v{s0}, v{s0 + 1}, v{s0 + 2}\nv_max3_f32 v1, v1, v{s0 + 3}, v{s0 + 4}")
            e(f"v_max3_f32 v1, v1, v{s0 + 5}, v{s0 + 6}\nv_max_f32 v1, v1, v{s0 + 7}")
            e("v_mov_b32 v2, v1\ns_nop 1\nv_permlane16_swap_b32 v1, v2\nv_max_f32 v1, v1, v2")
            e("v_mov_b32 v2, v1\ns_nop 1\nv_permlane32_swap_b32 v1, v2\nv_max_f32 v1, v1, v2")
            e("v_add_f32 v1, 0x40e00000, v1")
            e(f"s_cmp_lg_u32 s{S_FIRST}, 0\ns_cbranch_scc1 L_rare{j}_first")
            e("v_max_f32 v1, 0, v1")
            e("v_exp_f32 v2, -v1\nv_exp_f32 v3, -v1\ns_nop 0")
            for r in list(range(O_(j, 0), O_(j, 0) + 32, 2)) + [L_(j), L_(j) + 2]:
                e(f"v_pk_mul_f32 v[{r}:{r + 1}], v[{r}:{r + 1}], v[2:3]")
            e(f"L_rare{j}_first:")
            for r in range(4):
                e(f"v_sub_f32 v{NM(j) + r}, v{NM(j) + r}, v1")
            for k in range(8):
                e(f"v_sub_f32 v{s0 + k}, v{s0 + k}, v1")
            for k in range(8):
                e(f"v_exp_f32 v{s0 + k}, v{s0 + k}")
            e("s_nop 0")
            for k in range(4):
                e(f"v_cvt_pk_bf16_f32 v{P_(j) + k}, v{s0 + 2 * k}, v{s0 + 2 * k + 1}")
            e("s_nop 1")
            e(f"s_setpc_b64 s[{S_RET}:{S_RET + 1}]")

    def projection(self):
        e, o = self.e, self.o
        ACC = lambda u, j: 16 + 12 * u + 4 * j
        OF = lambda k, j: 64 + 12 * (k % 8) + 4 * j
        OA = 1
        e("L_proj:")
        self.lq = []
        for k in range(12, 16):
            self.trr(k)
        e(f"s_mul_i32 s{S_WOFF}, s{S_WAVE}, {1024 * 1280}\ns_lshl_b32 s{S_T0}, s{S_NT}, 7\ns_add_u32 s{S_WOFF}, s{S_WOFF}, s{S_T0}")
        e(f"s_mul_i32 s{S_KO}, s{S_WAVE}, {WAW}\ns_add_u32 s{S_KO}, s{S_KO}, {WA0}\ns_mul_i32 s{S_KS}, s{S_WAVE}, {WBW}")
        e("s_waitcnt vmcnt(0)\ns_barrier")
        e(f"s_cmp_lg_u32 s{S_WAVE}, 3\ns_cbranch_scc1 L_nosig")
        e("s_mov_b64 exec, 1")
        e(f"buffer_store_dword v17, v16, {srd_(SRD_WS)}, s{S_FLAG} offen sc1")
        e("s_mov_b64 exec, -1")
        e("L_nosig:")
        self.stamp("flag", "a")
        e(f"s_cmp_ge_u32 s{S_J}, 30\ns_cbranch_scc1 L_fin")

        def dma(k):
            ra, off = wslot(k)
            e(f"s_add_u32 m0, s{S_KO if ra == RAA else S_KS}, {off}")
            e(f"s_add_u32 s{S_T0}, s{S_WOFF}, {k * 32 * 1280}")
            self.wdma(S_T0)

        self.lwait0()
        for k in range(16, 18):
            self.trr(k)
        for k in range(22, 26):
            dma(k)
        self.lwait0()
        for k in range(18, 20):
            self.trr(k)
        for k in range(26, 28):
            dma(k)
        self.lwait0()
        for k in range(20, 22):
            self.trr(k)
        for k in range(28, 30):
            dma(k)
        self.lwait0()
        for k in range(30, 32):
            dma(k)
        for r in range(16, 64, 2):
            e(f"v_mov_b64 v[{r}:{r + 1}], 0")
        self.stamp("wo_issued", "a")
        e("v_and_b32 v1, 7, v0\nv_lshlrev_b32 v1, 7, v1")
        e(f"s_lshl_b32 s{S_T0}, s{S_B2}, 12\ns_lshl_b32 s{S_T1}, s{S_WAVE}, 10\ns_add_u32 s{S_T0}, s{S_T0}, s{S_T1}\ns_add_u32 s{S_T0}, s{S_T0}, {FLAG_OFF}")
        e(f"s_mul_i32 s{S_OOFF}, s{S_B2}, 3\ns_add_u32 s{S_OOFF}, s{S_OOFF}, s{S_MT}\ns_mul_i32 s{S_OOFF}, s{S_OOFF}, {3 * 32 * 4096}")
        e(f"s_lshl_b32 s{S_T1}, s{S_WAVE}, 15\ns_add_u32 s{S_OOFF}, s{S_OOFF}, s{S_T1}\ns_mov_b32 s{S_CNT}, 0")
        e("L_poll:")
        e(f"buffer_load_dword v2, v1, {srd_(SRD_WS)}, s{S_T0} offen sc1")
        e(f"s_add_u32 s{S_CNT}, s{S_CNT}, 1\ns_waitcnt vmcnt(0)\nv_cmp_ne_u32 vcc, 1, v2")
        e(f"s_cmp_ge_u32 s{S_CNT}, 0x40000\ns_cbranch_scc1 L_poll_end")
        e("s_cbranch_vccz L_poll_end\ns_sleep 2\ns_branch L_poll")
        e("L_poll_end:")
        self.stamp("polled", "a")
        e(f"v_lshlrev_b32 v{OA}, 4, v0\nv_add_u32 v{OA + 1}, {32 * 4096}, v{OA}\nv_add_u32 v{OA + 2}, {64 * 4096}, v{OA}")

        def ldo(k, j):
            r = [f"buffer_load_dwordx4 {v(OF(k, j), 4)}, v{OA + j}, {srd_(SRD_WS)}, s{S_OOFF} offen offset:{(k & 3) * 1024} sc1"]
            if k & 3 == 3 and j == 2:
                r.append(f"s_add_u32 s{S_OOFF}, s{S_OOFF}, 4096")
            return r

        for k in range(8):
            for j in range(3):
                for x in ldo(k, j):
                    e(x)
        if o["stamps"]:
            self.lwait0()
        e("s_waitcnt vmcnt(21)")
        for k in range(32):
            M, fill = [], {}
            for j in range(3):
                for u in range(4):
                    M.append((v(ACC(u, j), 4), WOFh(k, u), v(OF(k, j), 4), v(ACC(u, j), 4)))
                if k + 8 < 32:
                    fill[4 * j + 3] = ldo(k + 8, j)
            if 1 <= k <= 10:
                kk = k + 21
                ra, off = wslot(kk)
                for n, g in enumerate((0, 1, 2, 4, 5, 6, 8, 9)):
                    fill[g] = [("ds", f"ds_read_b64_tr_b16 {WOFh(kk, n >> 1, n & 1)}, v{ra + (n >> 1)} offset:{off + (n & 1) * 2048}")]
            if k == 20:
                fill[0] = [("wait0",)]
            if k < 31:
                fill.setdefault(11, []).append(f"s_waitcnt vmcnt({3 * (min(8, 31 - k) - 1)})")
            self.stream(M, fill)
        self.stamp("mfma_done", "a")
        e("v_and_b32 v1, 15, v0\nv_lshrrev_b32 v2, 4, v0")
        e(f"v_lshlrev_b32 v3, 8, v1\nv_add_u32 v3, s{S_KO}, v3")
        for u in range(4):
            e(f"v_or_b32 v15, {4 * u}, v2\nv_xor_b32 v15, v15, v1\nv_lshl_add_u32 v{RAA + u}, v15, 4, v3")
        for u in range(4):
            for j in range(3):
                self.ds(f"ds_write_b128 v{RAA + u}, {v(ACC(u, j), 4)} offset:{j * 4096}")
        e(f"s_lshl_b32 s{S_T0}, s{S_WAVE}, 2\nv_add_u32 v2, s{S_T0}, v2\nv_xor_b32 v15, v1, v2\nv_lshlrev_b32 v15, 4, v15")
        e(f"v_lshl_add_u32 v15, v2, 8, v15\nv_add_u32 v{DA}, {WA0}, v15\nv_add_u32 v{DA + 1}, {WA0 + 2 * WAW}, v15")
        e(f"v_mul_u32_u24 v2, 1280, v2\nv_lshl_add_u32 v{DA + 2}, v1, 3, v2")
        e(f"s_mul_i32 s{S_T0}, s{S_B2}, 3\ns_add_u32 s{S_T0}, s{S_T0}, s{S_MT}\ns_mul_i32 s{S_T0}, s{S_T0}, {48 * 1280}")
        e(f"s_lshl_b32 s{S_T1}, s{S_NT}, 7\ns_add_u32 s{S_T0}, s{S_T0}, s{S_T1}")
        self.lwait0()
        e("s_barrier")
        R = lambda it, w: 64 + 16 * it + 4 * w
        for it in range(3):
            for w in range(4):
                self.ds(f"ds_read_b128 {v(R(it, w), 4)}, v{DA + (w >> 1)} offset:{it * 4096 + (w & 1) * WAW}")
        for it in range(3):
            self.lwait(regs_of(v(R(it, 0), 16)))
            for r in (0, 2):
                e(f"v_pk_add_f32 {v(R(it, 0) + r, 2)}, {v(R(it, 0) + r, 2)}, {v(R(it, 1) + r, 2)}")
                e(f"v_pk_add_f32 {v(R(it, 2) + r, 2)}, {v(R(it, 2) + r, 2)}, {v(R(it, 3) + r, 2)}")
            for r in (0, 2):
                e(f"v_pk_add_f32 {v(R(it, 0) + r, 2)}, {v(R(it, 0) + r, 2)}, {v(R(it, 2) + r, 2)}")
            e(f"v_cvt_pk_bf16_f32 v{R(it, 1)}, v{R(it, 0)}, v{R(it, 0) + 1}")
            e(f"v_cvt_pk_bf16_f32 v{R(it, 1) + 1}, v{R(it, 0) + 2}, v{R(it, 0) + 3}")
            e(f"buffer_store_dwordx2 {v(R(it, 1), 2)}, v{DA + 2}, {srd_(SRD_OUT)}, s{S_T0} offen")
            e(f"s_add_u32 s{S_T0}, s{S_T0}, {16 * 1280}")
        e("L_fin:")
        if o["stamps"]:
            e("s_waitcnt vmcnt(0)")
            self.stamp("end", "a")
            e("s_waitcnt lgkmcnt(0)")
            e(f"s_cmp_lg_u32 s{S_WAVE}, {0 if o.get('cstamp') else 3}\ns_cbranch_scc1 L_end")
            n = len(self.stamps)
            if o.get("dbgout"):
                e(f"s_cmp_lg_u32 s2, 77\ns_cbranch_scc1 L_end")
                names = [x for x, _ in self.stamps]
                e("v_mov_b32 v3, 0")
                for k, nm in enumerate(o["dbgout"].split(",")):
                    r = dict(self.stamps)[nm]
                    r0 = dict(self.stamps)["start_c" if nm.endswith("_c") else "start"]
                    e(f"s_sub_u32 s{S_T0}, s{r}, s{r0}\nv_mov_b32 v4, s{S_T0}")
                    e(f"buffer_store_dword v4, v3, {srd_(SRD_DBG)}, 0 offen offset:{32 + 4 * k}")
                e("s_branch L_end")
            e(f"s_mul_i32 s{S_T0}, s2, {n * 8}\ns_add_u32 s{S_T0}, s{S_T0}, {STAMP_OFF}\nv_mov_b32 v3, 0")
            for k, (_, r) in enumerate(self.stamps):
                e(f"v_mov_b32 v4, s{r}\nv_mov_b32 v5, s{r + 1}")
                e(f"buffer_store_dwordx2 v[4:5], v3, {srd_(SRD_WS)}, s{S_T0} offen offset:{8 * k}")
        e("L_end:\ns_endpgm")

    def build(self):
        self.prologue()
        self.loader()
        self.lq = []
        self.compute_setup()
        self.qphase()
        self.attention()
        self.projection()
        self.rare()
        self.e("L_code_end:")
        bad = check(self.L)
        assert bad == 0, f"{bad} hazards"
        hdr = open("cdna_kernels/" + NAME + ".s.ref").read().split("; Override launch")[0]
        txt = hdr
        txt += "; @launch grid=(256,1,1) block=(256,1,1) lds=163840\n"
        if self.stamps:
            txt += "; stamps: " + " ".join(n for n, _ in self.stamps) + "\n"
        txt += f""".amdgcn_target "amdgcn-amd-amdhsa--gfx950"
.text
.globl {NAME}_kernel
.p2align 8
.type {NAME}_kernel,@function
{NAME}_kernel:
"""
        for ln in self.L:
            txt += (ln if ln.endswith(":") else "    " + ln) + "\n"
        txt += f"""
.section .rodata,"a"
.p2align 6
.amdhsa_kernel {NAME}_kernel
  .amdhsa_next_free_vgpr 512
  .amdhsa_next_free_sgpr 102
  .amdhsa_accum_offset 256
  .amdhsa_group_segment_fixed_size 0
  .amdhsa_kernarg_size 64
  .amdhsa_user_sgpr_count 2
  .amdhsa_user_sgpr_kernarg_segment_ptr 1
  .amdhsa_system_sgpr_workgroup_id_x 1
  .amdhsa_float_denorm_mode_32 3
.end_amdhsa_kernel
"""
        return txt


def main():
    out = sys.argv[1]
    kw = {}
    for arg in sys.argv[2:]:
        k, val = arg.split("=", 1)
        if val in ("True", "False"):
            val = val == "True"
        elif val.lstrip("-").isdigit() and k not in ("mapping",):
            val = int(val)
        kw[k] = val
    g = Gen(**kw)
    txt = g.build()
    open(out, "w").write(txt)
    print(out, "lines", len(g.L), "stamps", [n for n, _ in g.stamps])


if __name__ == "__main__":
    main()
```

```python
import math
import struct
import sys

from hazard import check, regs_of

NAME = "standalone__mha_block_cached__near_ridge"
STAMP_OFF = 0x8000000
LANE_OFF = 0x4000000
FLAG_A = 0x1000000
FLAG_B = 0x1100000
PART = 0x1400000
SPIN_MAX = 0x100000

DEFAULTS = dict(
    stamps=False,
    kvpol="nt",
    qpol="",
    wpol="",
    rot=2,
    pf_code=True,
    kvq=8,
)

def f2u(x):
    return struct.unpack("<I", struct.pack("<f", x))[0]


def v(a, n=1):
    return f"v{a}" if n == 1 else f"v[{a}:{a + n - 1}]"


def a_(a, n=1):
    return f"a{a}" if n == 1 else f"a[{a}:{a + n - 1}]"


def srd_(d):
    return f"s[{d}:{d + 3}]"


S_WAVE = 3
SRD_K, SRD_V, SRD_X, SRD_WQ, SRD_WO, SRD_DBG, SRD_WS, SRD_OUT = 20, 24, 28, 32, 36, 40, 44, 48
S_H, S_B, S_BH = 52, 53, 54
S_T0, S_T1, S_T2 = 55, 56, 57
S_RET = 58
S_CNT, S_SLOT, S_NEED, S_MASK = 60, 61, 62, 63
S_J, S_KG, S_I, S_SPIN = 64, 65, 66, 67
S_N, S_MINP, S_PUB, S_FULL = 68, 69, 70, 71
S_C, S_XO, S_WO_, S_REQ, S_OB, S_PB = 72, 73, 74, 75, 76, 77
S_STAMP = 4
SRD_CODE = 96
S_TAG = 100

SYNC = 163840 - 1024
QSLOT = 34816
QS0 = SYNC - 3 * QSLOT
QEND = SYNC
KSTEP = 5120

O_ = lambda j, t: 16 + 32 * j + 4 * t
L_ = lambda j: 112 + 4 * j
NM = lambda j: 124 + 4 * j
S_ = lambda j, u: 136 + 8 * j + 4 * u
E_ = 160
P_ = lambda j: 168 + 4 * j
Q_ = lambda j, s: 180 + 16 * j + 4 * s
AK = lambda s: 228 + s
AV = lambda t: 232 + t
AW = lambda t: 240 + t
AX = lambda s: 248 + s
V_ACC = 250
ONES = 252
V_TAG = 240
V_LA, V_L, V_PA, V_P = 4, 5, 6, 7
RW = 8
KF = lambda u, s: 16 * u + 4 * s
VF = lambda t: 32 + 4 * t
WF = lambda t: 4 * t
XF = lambda p, j: 32 + 12 * p + 4 * j


def phys(n):
    return 26 + n if n < 5 else (n - 5 if n < 31 else 31)


class Gen:
    def __init__(self, **kw):
        self.o = dict(DEFAULTS)
        self.o.update(kw)
        self.L = []
        self.lq = []
        self.vq = []
        self.stamps = []
        self.strict = False

    def e(self, s):
        for ln in s.split("\n"):
            ln = ln.strip()
            if ln:
                self.L.append(ln)

    def ds(self, text):
        self.e(text)
        dst = text.split(None, 1)[1].split(",")[0]
        self.lq.append(regs_of(dst) if "read" in text.split()[0] else set())

    def lwait(self, regs):
        idx = -1
        for i, d in enumerate(self.lq):
            if d & regs:
                idx = i
        if idx < 0:
            return False
        n = min(len(self.lq) - 1 - idx, 15)
        self.e(f"s_waitcnt lgkmcnt({n})")
        self.lq = self.lq[len(self.lq) - n:] if n else []
        return True

    def lwait0(self):
        self.e("s_waitcnt lgkmcnt(0)")
        self.lq = []

    def vwait(self, tag):
        if tag not in self.vq:
            return
        idx = max(i for i, t in enumerate(self.vq) if t == tag)
        n = min(len(self.vq) - 1 - idx, 63)
        self.e(f"s_waitcnt vmcnt({n})")
        self.vq = self.vq[len(self.vq) - n:] if n else []

    def mfma(self, d, a, b, c):
        w = self.lwait(regs_of(a) | regs_of(b))
        assert not (w and self.strict), f"unplanned wait before mfma {d} {a} {b}"
        self.e(f"v_mfma_f32_16x16x32_bf16 {d}, {a}, {b}, {c}")

    def stream(self, M, fill):
        for k, m in enumerate(M):
            self.mfma(*m)
            for x in fill.get(k, []):
                if isinstance(x, str):
                    self.e(x)
                elif x[0] == "ds":
                    self.ds(x[1])
                elif x[0] == "wait":
                    self.lwait(x[1])
                else:
                    self.lwait0()

    def stamp(self, name, role):
        if self.o["stamps"]:
            names = [name]
            if self.o.get("both") and name in self.o["both"].split(","):
                names.append(name + "_c")
            for nm in names:
                n = len([1 for x in self.stamps if x[2] == role])
                k = 78 + 2 * n if n < 9 else S_STAMP + 2 * (n - 9)
                op = "s_memtime" if (self.o.get("clk") or nm.endswith("_c")) else "s_memrealtime"
                self.e(f"{op} s[{k}:{k + 1}]")
                self.stamps.append((nm, k, role))

    def stamp_store(self, role):
        if self.o["stamps"]:
            self.e(f"@STAMPS {role}")

    def expand_stamps(self):
        out = []
        n = len(self.stamps)
        for ln in self.L:
            if ln.startswith("@STAMPS"):
                role = ln.split()[1]
                out.append("s_waitcnt lgkmcnt(0)")
                out += [f"s_mul_i32 s{S_T0}, s2, {n * 8}", f"s_add_u32 s{S_T0}, s{S_T0}, {STAMP_OFF}", "v_mov_b32 v3, 0"]
                for k, (_, r, ro) in enumerate(self.stamps):
                    if ro == role:
                        out += [f"v_mov_b32 v4, s{r}", f"v_mov_b32 v5, s{r + 1}",
                                f"buffer_store_dwordx2 v[4:5], v3, {srd_(SRD_WS)}, s{S_T0} offen offset:{8 * k}"]
            else:
                out.append(ln)
        self.L = out

    def srd(self, d, lo, off, size):
        if off:
            self.e(f"s_add_u32 s{d}, s{lo}, {off}\ns_addc_u32 s{d + 1}, s{lo + 1}, 0")
        else:
            self.e(f"s_mov_b32 s{d}, s{lo}\ns_mov_b32 s{d + 1}, s{lo + 1}")
        if size is not None:
            self.e(f"s_mov_b32 s{d + 2}, {size}")
        self.e(f"s_mov_b32 s{d + 3}, 0x20000")

    def code_srd(self):
        e = self.e
        n = getattr(self, "npc", 0)
        self.npc = n + 1
        e(f"s_getpc_b64 s[{SRD_CODE}:{SRD_CODE + 1}]\nL_pc{n}:")
        e(f"s_sub_u32 s{SRD_CODE}, s{SRD_CODE}, L_pc{n}-{NAME}_kernel\ns_subb_u32 s{SRD_CODE + 1}, s{SRD_CODE + 1}, 0")
        e(f"s_mov_b32 s{SRD_CODE + 2}, L_code_end-{NAME}_kernel\ns_mov_b32 s{SRD_CODE + 3}, 0x20000")

    def prologue(self):
        e = self.e
        e("s_cmp_ge_u32 s2, 256\ns_cbranch_scc1 L_end")
        e("s_load_dwordx8 s[4:11], s[0:1], 0")
        e("s_load_dwordx8 s[12:19], s[0:1], 32")
        self.stamp("start", "l")
        e("v_lshrrev_b32 v1, 6, v0")
        e("v_and_b32 v0, 63, v0")
        e(f"v_readfirstlane_b32 s{S_WAVE}, v1")
        e(f"s_and_b32 s{S_KG}, s2, 3\ns_bfe_u32 s{S_I}, s2, 0x30003\ns_lshr_b32 s{S_J}, s2, 3")
        e(f"s_and_b32 s{S_B}, s2, 4\ns_lshr_b32 s{S_T2}, s2, 6\ns_add_u32 s{S_B}, s{S_B}, s{S_T2}")
        e(f"s_lshl3_add_u32 s{S_H}, s{S_KG}, s{S_I}")
        e(f"s_cmp_lg_u32 s{S_WAVE}, 3\ns_cbranch_scc1 L_compute")

    def loader(self):
        e, o = self.e, self.o
        nq, nkv = o.get("q_noload"), o.get("kv_noload")
        WQA, XA, KA, VA, DA = 20, 24, 28, 32, 34
        e("v_lshrrev_b32 v1, 4, v0\nv_and_b32 v2, 15, v0\nv_lshrrev_b32 v3, 3, v0\nv_and_b32 v16, 7, v0")
        for b in range(0, 4, 2):
            e(f"v_or_b32 v17, {(b >> 1) << 2}, v1\nv_lshlrev_b32 v17, 1, v17\nv_xor_b32 v17, v17, v2\nv_lshlrev_b32 v17, 4, v17")
            e("v_lshl_add_u32 v17, v1, 13, v17")
            for bb in (b, b + 1):
                e(f"v_add_u32 v{WQA + bb}, {bb * 4 * 8192 - bb * 1024}, v17")
        e("v_mul_u32_u24 v18, 1280, v3")
        for b in range(2):
            e(f"v_or_b32 v17, {4 * b}, v1\nv_xor_b32 v17, v17, v16\nv_lshl_add_u32 v17, v17, 4, v18")
            for bb in (b, b + 2):
                e(f"v_add_u32 v{XA + bb}, {bb * 8 * 1280 - bb * 1024}, v17")
        if o["rot"] == 2:
            e(f"s_add_u32 s{S_C}, s{S_I}, s{S_T2}\ns_and_b32 s{S_C}, s{S_C}, 1\ns_mul_i32 s{S_C}, s{S_C}, 5")
        elif o["rot"] == 4:
            e(f"s_add_u32 s{S_C}, s{S_I}, s{S_T2}\ns_and_b32 s{S_C}, s{S_C}, 3\ns_mul_i32 s{S_C}, s{S_C}, 5")
            e(f"s_add_u32 s{S_C}, s{S_C}, 1\ns_lshr_b32 s{S_C}, s{S_C}, 1")
        else:
            e(f"s_mov_b32 s{S_C}, 0")
        e(f"s_mov_b32 s{S_SLOT}, {QS0}\ns_mul_i32 s{S_T1}, s{S_B}, 184320\ns_lshl_b32 s{S_T2}, s{S_H}, 8")
        e("s_waitcnt lgkmcnt(0)")
        self.srd(SRD_WQ, 10, f"s{S_T2}", None)
        e(f"s_sub_u32 s{SRD_WQ + 2}, {0 if nq else 5242880}, {0 if nq else 's' + str(S_T2)}")
        self.srd(SRD_X, 4, f"s{S_T1}", 0 if nq else 184320)
        e("s_branch L_ldq_go")

        e("L_qstep:")
        e(f"s_lshl_b32 s{S_WO_}, s{S_C}, 19\ns_lshl_b32 s{S_XO}, s{S_C}, 7")
        for a in range(5):
            if a < 4:
                e(f"s_add_u32 m0, s{S_SLOT}, {a * 4096}")
                e(f"s_add_u32 s{S_T0}, s{S_WO_}, {a * 16 * 8192}")
                for b in range(4):
                    e(f"buffer_load_dwordx4 v{WQA + b}, {srd_(SRD_WQ)}, s{S_T0} offen offset:{b * 1024} {o['qpol']} lds")
            e(f"s_add_u32 m0, s{S_SLOT}, {16384 + a * 4096}")
            e(f"s_add_u32 s{S_T0}, s{S_XO}, {a * 32 * 1280}")
            for b in range(4 if a < 4 else 2):
                e(f"buffer_load_dwordx4 v{XA + b}, {srd_(SRD_X)}, s{S_T0} offen offset:{b * 1024} {o['qpol']} lds")
        e(f"s_add_u32 s{S_C}, s{S_C}, 1\ns_cmp_eq_u32 s{S_C}, 10\ns_cselect_b32 s{S_C}, 0, s{S_C}")
        e(f"s_add_u32 s{S_SLOT}, s{S_SLOT}, {QSLOT}\ns_cmp_eq_u32 s{S_SLOT}, {QEND}\ns_cselect_b32 s{S_SLOT}, {QS0}, s{S_SLOT}")
        e(f"s_setpc_b64 s[{S_RET}:{S_RET + 1}]")

        def qstep(s):
            e(f"s_call_b64 s[{S_RET}:{S_RET + 1}], L_qstep")
            self.vq += [f"q{s}"] * 34

        def qbar(s):
            self.vwait(f"q{s}")
            e("s_barrier")

        def tile(srd, areg, nreg, soff, lds, tag):
            for a in range(2):
                if isinstance(lds, str):
                    e(f"s_add_u32 m0, {lds}, {a * 4096}\ns_add_u32 s{S_T0}, {soff}, {a * 4096}")
                else:
                    e(f"s_mov_b32 m0, {lds + a * 4096}\ns_mov_b32 s{S_T0}, {soff + a * 4096}")
                for b in range(4):
                    e(f"buffer_load_dwordx4 v{areg + b % nreg}, {srd_(srd)}, s{S_T0} offen offset:{b * 1024} {o['kvpol']} lds")
            self.vq += [tag] * 8

        K = lambda i: tile(SRD_K, KA, 4, i * 8192, (i & 7) * 16384, f"k{i}")
        V = lambda i: tile(SRD_V, VA, 2, i * 8192, (i & 7) * 16384 + 8192, f"v{i}")

        e("L_ldq_go:")
        self.stamp("go", "l")
        qstep(0)
        for b in range(4):
            e(f"v_or_b32 v17, {4 * b}, v1\nv_xor_b32 v17, v17, v2\nv_lshlrev_b32 v17, 4, v17\nv_lshl_add_u32 v{KA + b}, v1, 8, v17")
        for b in range(2):
            e(f"v_or_b32 v17, {4 * b}, v1\nv_lshlrev_b32 v17, 1, v17\nv_xor_b32 v17, v17, v2\nv_lshlrev_b32 v17, 4, v17\nv_lshl_add_u32 v{VA + b}, v1, 8, v17")
        e(f"s_lshl_b32 s{S_BH}, s{S_B}, 5\ns_add_u32 s{S_BH}, s{S_BH}, s{S_H}\ns_lshl_b32 s{S_T0}, s{S_BH}, 18")
        self.srd(SRD_K, 6, f"s{S_T0}", 0 if nkv else 0x40000)
        self.srd(SRD_V, 8, f"s{S_T0}", 0 if nkv else 0x40000)
        self.srd(SRD_WO, 12, None, 5242880)
        self.srd(SRD_WS, 18, None, 0x10000000)
        e(f"s_add_u32 s{S_T0}, s{S_KG}, 1")
        for n in range(5):
            e(f"v_add_u32 v16, {64 * n}, v0\nv_mul_u32_u24 v17, 6554, v16\nv_lshrrev_b32 v17, 16, v17")
            e("v_mul_u32_u24 v18, 10, v17\nv_sub_u32 v16, v16, v18\nv_lshrrev_b32 v18, 1, v16")
            e(f"v_add_u32 v19, s{S_T0}, v18\nv_and_b32 v19, 3, v19\nv_cmp_gt_u32 vcc, 4, v18")
            e("v_and_b32 v16, 1, v16\nv_mul_u32_u24 v17, 1280, v17\nv_cndmask_b32 v18, v18, v19, vcc")
            e("v_lshl_add_u32 v17, v16, 4, v17\nv_lshl_add_u32 v17, v18, 5, v17")
            e(f"v_subrev_u32 v{DA + n}, {1024 * n if n < 4 else 0}, v17")
        e(f"v_lshlrev_b32 v16, 4, v0\nv_add_u32 v16, {SYNC}, v16\nv_mov_b64 v[40:41], 0\nv_mov_b64 v[42:43], 0")
        e("ds_write_b128 v16, v[40:43]")
        e(f"v_lshlrev_b32 v{V_LA}, 2, v0\nv_add_u32 v{V_LA}, {SYNC}, v{V_LA}")
        e(f"v_min_u32 v{V_PA}, 2, v0\nv_lshlrev_b32 v{V_PA}, 8, v{V_PA}\nv_add_u32 v{V_PA}, {SYNC + 256}, v{V_PA}")
        e("s_waitcnt lgkmcnt(0)")
        kv = [lambda: K(0), lambda: K(1), lambda: V(0), lambda: K(2), lambda: V(1), lambda: K(3), lambda: V(2)]
        kvq = o["kvq"]
        plan = {s: [] for s in range(10)}
        for n, f in enumerate(kv):
            plan[kvq + n * (10 - kvq) // 7].append(f)
        qstep(1)
        for s in range(10):
            qbar(s)
            if s + 2 < 10:
                qstep(s + 2)
            if s == o.get("warmq", -1):
                e(f"s_lshl_b32 s{S_T1}, s{S_KG}, 5\ns_add_u32 s{S_T1}, s{S_T1}, s{S_J}\ns_mul_i32 s{S_T1}, s{S_T1}, 40960")
                e("v_lshlrev_b32 v18, 7, v0")
                for n in range(5):
                    e(f"buffer_load_dword v19, v18, {srd_(SRD_WO)}, s{S_T1} offen\ns_add_u32 s{S_T1}, s{S_T1}, 8192")
                    self.vq.append("warm")
            if s == kvq:
                self.stamp("kv_start", "l")
            for f in plan[s]:
                f()
        self.vwait("k0")
        e("s_barrier")
        self.stamp("b_pre", "l")

        def publish():
            e(f"v_mov_b32 v{V_L}, s{S_PUB}\nds_write_b32 v{V_LA}, v{V_L}")

        nneed = [0]

        def need():
            k = nneed[0]
            nneed[0] += 1
            e(f"s_cmp_ge_u32 s{S_MINP}, s{S_REQ}\ns_cbranch_scc1 L_have{k}")
            e(f"s_call_b64 s[{S_RET}:{S_RET + 1}], L_need\nL_have{k}:")

        e(f"s_mov_b32 s{S_N}, 3\ns_mov_b32 s{S_MINP}, 0\ns_mov_b32 s{S_PUB}, 0")
        e("L_kv:")
        e(f"s_max_u32 s{S_REQ}, s{S_N}, 6\ns_sub_u32 s{S_REQ}, s{S_REQ}, 6\ns_mov_b32 s{S_FULL}, s{S_N}")
        need()
        e(f"s_add_u32 s{S_T1}, s{S_N}, 1\ns_lshl_b32 s{S_XO}, s{S_T1}, 13\ns_and_b32 s{S_T1}, s{S_T1}, 7\ns_lshl_b32 s{S_T1}, s{S_T1}, 14")
        tile(SRD_K, KA, 4, f"s{S_XO}", f"s{S_T1}", "")
        e(f"s_sub_u32 s{S_XO}, s{S_XO}, 8192\ns_and_b32 s{S_T1}, s{S_N}, 7\ns_lshl_b32 s{S_T1}, s{S_T1}, 14\ns_add_u32 s{S_T1}, s{S_T1}, 8192")
        tile(SRD_V, VA, 2, f"s{S_XO}", f"s{S_T1}", "")
        e(f"s_sub_u32 s{S_T1}, s{S_N}, 1\ns_max_u32 s{S_PUB}, s{S_PUB}, s{S_T1}")
        e("s_waitcnt vmcnt(32)")
        publish()
        if o.get("tsteps"):
            e(f"s_memrealtime s[{S_RET}:{S_RET + 1}]\ns_waitcnt lgkmcnt(0)\ns_mov_b32 m0, s{S_N}\nv_writelane_b32 v44, s{S_RET}, m0")
            e(f"s_add_u32 m0, s{S_N}, 32\nv_writelane_b32 v44, s{S_MINP}, m0")
        if o.get("warm"):
            w0 = o["warm"]
            e(f"s_sub_u32 s{S_T0}, s{S_N}, {w0}\ns_cmp_ge_u32 s{S_T0}, 5\ns_cbranch_scc1 L_kv_w")
            e(f"s_lshl_b32 s{S_T1}, s{S_KG}, 5\ns_add_u32 s{S_T1}, s{S_T1}, s{S_J}\ns_mul_i32 s{S_T1}, s{S_T1}, 40960")
            e(f"s_lshl_b32 s{S_T0}, s{S_T0}, 13\ns_add_u32 s{S_T0}, s{S_T0}, s{S_T1}\nv_lshlrev_b32 v18, 7, v0")
            e(f"buffer_load_dword v19, v18, {srd_(SRD_WO)}, s{S_T0} offen")
            e("L_kv_w:")
        if o["pf_code"]:
            e(f"s_cmp_lg_u32 s{S_N}, 27\ns_cbranch_scc1 L_kv_n")
            self.code_srd()
            e(f"s_and_b32 s{S_T0}, s{S_J}, 3\ns_lshl_b32 s{S_T0}, s{S_T0}, 13\nv_lshlrev_b32 v18, 7, v0")
            e(f"buffer_load_dword v19, v18, {srd_(SRD_CODE)}, s{S_T0} offen")
            e("L_kv_n:")
        e(f"s_add_u32 s{S_N}, s{S_N}, 1\ns_cmp_lt_u32 s{S_N}, 31\ns_cbranch_scc1 L_kv")
        e(f"s_mov_b32 s{S_REQ}, 25\ns_mov_b32 s{S_FULL}, 31")
        need()
        self.vq = ["s29"] * 16 + ["s30"] * 16
        V(31)
        self.stamp("kv_end", "l")
        self.vwait("s29")
        e(f"s_max_u32 s{S_PUB}, s{S_PUB}, 30")
        publish()

        def wsrc_static(n):
            if n % 4 == 0:
                e(f"s_add_u32 s{S_T1}, s{S_I}, {n >> 2}\ns_and_b32 s{S_T1}, s{S_T1}, 7")
                e(f"s_mul_i32 s{S_WO_}, s{S_T1}, {128 * 1280}\ns_add_u32 s{S_WO_}, s{S_WO_}, s{S_XO}")

        def wstep(lds):
            e(f"s_mov_b32 m0, {lds}\ns_nop 0")
            for n in range(4):
                e(f"buffer_load_dwordx4 v{DA + n}, {srd_(SRD_WO)}, s{S_WO_} offen offset:{n * 1024} {o['wpol']} lds")
            e("s_add_u32 m0, m0, 4096\ns_nop 0")
            e(f"buffer_load_dwordx4 v{DA + 4}, {srd_(SRD_WO)}, s{S_WO_} offen {o['wpol']} lds")
            e(f"s_add_u32 s{S_WO_}, s{S_WO_}, {32 * 1280}")
            self.vq += ["w"] * 5

        e(f"s_mul_i32 s{S_XO}, s{S_KG}, {1024 * 1280}\ns_mul_i32 s{S_T0}, s{S_I}, 160\ns_add_u32 s{S_XO}, s{S_XO}, s{S_T0}")
        for n in range(5):
            wsrc_static(n)
            wstep(phys(n) * KSTEP)
            if n == 2:
                self.vwait("s30")
                e(f"s_max_u32 s{S_PUB}, s{S_PUB}, 31")
                publish()
        self.vwait("v31")
        e(f"s_mov_b32 s{S_PUB}, 32")
        publish()
        self.stamp("kv_landed", "l")
        e(f"s_mov_b32 s{S_N}, 5\ns_mov_b32 s{S_SLOT}, 0\ns_mov_b32 s{S_FULL}, 33")
        e("L_wo:")
        e(f"s_add_u32 s{S_REQ}, s{S_SLOT}, {KSTEP - 1}\ns_lshr_b32 s{S_REQ}, s{S_REQ}, 14\ns_min_u32 s{S_REQ}, s{S_REQ}, 7\ns_add_u32 s{S_REQ}, s{S_REQ}, 26")
        need()
        e(f"s_and_b32 s{S_T0}, s{S_N}, 3\ns_cmp_lg_u32 s{S_T0}, 0\ns_cbranch_scc1 L_wo_same")
        e(f"s_lshr_b32 s{S_T1}, s{S_N}, 2\ns_add_u32 s{S_T1}, s{S_T1}, s{S_I}\ns_and_b32 s{S_T1}, s{S_T1}, 7")
        e(f"s_mul_i32 s{S_WO_}, s{S_T1}, {128 * 1280}\ns_add_u32 s{S_WO_}, s{S_WO_}, s{S_XO}")
        e("L_wo_same:")
        wstep(f"s{S_SLOT}")
        e(f"s_cmp_lg_u32 s{S_N}, 9\ns_cbranch_scc1 L_wo_n")
        e(f"s_waitcnt vmcnt(25)\ns_mov_b32 s{S_PUB}, 33")
        publish()
        e("L_wo_n:")
        e(f"s_add_u32 s{S_SLOT}, s{S_SLOT}, {KSTEP}\ns_add_u32 s{S_N}, s{S_N}, 1\ns_cmp_lt_u32 s{S_N}, 31\ns_cbranch_scc1 L_wo")
        e(f"s_mov_b32 s{S_REQ}, 34")
        need()
        e("s_waitcnt lgkmcnt(0)")
        wstep(31 * KSTEP)
        self.stamp("wo_issued", "l")
        e("s_waitcnt vmcnt(0)")
        self.stamp("wo_landed", "l")
        e("s_barrier")
        if o.get("tsteps"):
            e(f"s_lshl_b32 s{S_T0}, s2, 8\ns_add_u32 s{S_T0}, s{S_T0}, {LANE_OFF}\nv_lshlrev_b32 v41, 2, v0")
            e("v_cmp_gt_u32 vcc, 32, v0\nv_subrev_u32 v45, s78, v44\ns_nop 0\nv_cndmask_b32 v44, v44, v45, vcc")
            e(f"buffer_store_dword v44, v41, {srd_(SRD_WS)}, s{S_T0} offen")
        self.stamp_store("l")
        e("s_endpgm")

        def rdprog():
            e(f"ds_read_b32 v{V_P}, v{V_PA}\ns_waitcnt lgkmcnt(0)")
            e(f"v_readlane_b32 s{S_MINP}, v{V_P}, 0\nv_readlane_b32 s{S_T0}, v{V_P}, 1\nv_readlane_b32 s{S_T1}, v{V_P}, 2\ns_nop 0")
            e(f"s_min_u32 s{S_MINP}, s{S_MINP}, s{S_T0}\ns_min_u32 s{S_MINP}, s{S_MINP}, s{S_T1}")
            e(f"s_cmp_ge_u32 s{S_MINP}, s{S_REQ}\ns_cbranch_scc1 L_need_ret")

        e("L_need:")
        rdprog()
        e(f"s_max_u32 s{S_PUB}, s{S_PUB}, s{S_FULL}\ns_mov_b32 s{S_SPIN}, 0\ns_waitcnt vmcnt(0)")
        publish()
        e("L_need_spin:")
        rdprog()
        e(f"s_sleep 1\ns_add_u32 s{S_SPIN}, s{S_SPIN}, 1\ns_cmp_lt_u32 s{S_SPIN}, {SPIN_MAX}\ns_cbranch_scc1 L_need_spin")
        e("L_need_ret:")
        e(f"s_setpc_b64 s[{S_RET}:{S_RET + 1}]")

    def compute_setup(self):
        e = self.e
        e("L_compute:")
        if self.o["pf_code"]:
            self.code_srd()
            e(f"s_and_b32 s{S_T0}, s{S_J}, 3\ns_lshl_b32 s{S_T0}, s{S_T0}, 13\nv_lshlrev_b32 v1, 7, v0")
            e(f"s_cmp_lg_u32 s{S_WAVE}, 0\ns_cbranch_scc1 L_nopf")
            e(f"buffer_load_dword v251, v1, {srd_(SRD_CODE)}, s{S_T0} offen")
            e("L_nopf:")
        e("s_waitcnt lgkmcnt(0)")
        self.srd(SRD_OUT, 14, None, 1474560)
        self.srd(SRD_DBG, 16, None, 256)
        self.srd(SRD_WS, 18, None, 0x10000000)
        e(f"s_lshl_b32 s{S_BH}, s{S_B}, 5\ns_add_u32 s{S_BH}, s{S_BH}, s{S_H}")
        e(f"s_lshl2_add_u32 s{S_T0}, s2, s{S_WAVE}\ns_cmp_lg_u32 s{S_T0}, 1\ns_cbranch_scc1 L_notag")
        e(f"s_memrealtime s[{S_RET}:{S_RET + 1}]\nv_mov_b32 v16, 0\ns_waitcnt lgkmcnt(0)")
        e(f"s_or_b32 s{S_RET + 1}, s{S_RET + 1}, 0x40000000")
        e(f"v_mov_b32 v18, s{S_RET}\nv_mov_b32 v19, s{S_RET + 1}\ns_mov_b64 exec, 1")
        e(f"buffer_store_dwordx2 v[18:19], v16, {srd_(SRD_DBG)}, 0 offen sc1")
        e("s_mov_b64 exec, -1\ns_nop 1")
        e("L_notag:")
        e("v_lshrrev_b32 v1, 4, v0\nv_and_b32 v2, 15, v0\nv_lshrrev_b32 v3, 2, v2\nv_and_b32 v16, 3, v0")
        e("v_and_b32 v17, 1, v1\nv_lshlrev_b32 v18, 1, v17\nv_lshl_or_b32 v17, v17, 2, v3\nv_lshrrev_b32 v19, 1, v1\nv_or_b32 v18, v18, v19")
        e("v_lshl_add_u32 v19, v1, 3, v3\nv_lshlrev_b32 v19, 8, v19\nv_lshl_add_u32 v19, v16, 3, v19")
        e(f"v_add_u32 v19, {QS0}, v19")
        for t in range(8):
            e(f"v_xor_b32 v20, {t}, v17\nv_lshl_add_u32 v{AW(t)}, v20, 5, v19")
        e(f"s_mul_i32 s{S_T0}, s{S_WAVE}, {48 * 128}\ns_add_u32 s{S_T0}, s{S_T0}, {QS0 + 16384}")
        e(f"v_lshlrev_b32 v19, 7, v2\nv_add_u32 v19, s{S_T0}, v19\nv_lshrrev_b32 v21, 1, v2")
        for s in range(2):
            e(f"v_or_b32 v20, {4 * s}, v1\nv_xor_b32 v20, v20, v21\nv_lshl_add_u32 v{AX(s)}, v20, 4, v19")
        e("v_lshlrev_b32 v19, 8, v2")
        for s in range(4):
            e(f"v_or_b32 v20, {4 * s}, v18\nv_xor_b32 v20, v20, v2\nv_lshl_add_u32 v{AK(s)}, v20, 4, v19")
        e(f"v_lshl_add_u32 v19, v1, 2, v3\nv_lshlrev_b32 v19, 8, v19\nv_lshl_add_u32 v19, v16, 3, v19\nv_add_u32 v19, {8192 + 65536}, v19")
        for t in range(8):
            e(f"v_xor_b32 v20, {t}, v17\nv_lshl_add_u32 v{AV(t)}, v20, 5, v19")
        e(f"v_mov_b32 v{V_LA}, {SYNC}\nv_mov_b32 v{V_P}, 0")
        e(f"s_lshl_b32 s{S_T0}, s{S_WAVE}, 8\ns_add_u32 s{S_T0}, s{S_T0}, {SYNC + 256}\nv_lshlrev_b32 v19, 2, v0\nv_add_u32 v{V_PA}, s{S_T0}, v19")
        e(f"v_lshrrev_b32 v19, 2, v0\nv_mul_u32_u24 v19, 160, v19\nv_lshl_add_u32 v{RW}, v16, 3, v19")
        e(f"v_add_u32 v{RW + 1}, {12 * KSTEP}, v{RW}\nv_add_u32 v{RW + 2}, {24 * KSTEP}, v{RW}")
        for r in range(16, 124, 2):
            e(f"v_mov_b64 v[{r}:{r + 1}], 0")
        e(f"v_mov_b64 v[{P_(2)}:{P_(2) + 1}], 0\nv_mov_b64 v[{P_(2) + 2}:{P_(2) + 3}], 0")
        for r in range(4):
            e(f"v_mov_b32 v{ONES + r}, 0x3f803f80")
        e(f"s_mov_b32 s{S_NEED}, 1\ns_mov_b32 s{S_MASK}, 0x40004000")

    def qphase(self):
        e = self.e

        def rdw(t, s, hh):
            return ("ds", f"ds_read_b64_tr_b16 {a_(WF(t) + 2 * hh, 2)}, v{AW(t)} offset:{s * 8192 + hh * 1024}")

        def rdx(p, j):
            return ("ds", f"ds_read_b128 {a_(XF(p, j), 4)}, v{AX(p)} offset:{j * 2048}")

        def wf(*ts):
            r = set()
            for t in ts:
                r |= regs_of(a_(WF(t), 4))
            return r

        M, fill = [], {}
        for s in range(2):
            for t in range(8):
                for j in range(3):
                    M.append((v(O_(j, t), 4), a_(WF(t), 4), a_(XF(s, j), 4), v(O_(j, t), 4)))
        add = lambda r: f"v_add_u32 v{r}, s{S_T0}, v{r}"
        F = lambda k: fill.setdefault(k, [])
        for t in range(8):
            if t in (1, 3, 5):
                F(3 * t + 2).append(("wait", wf(t + 1, t + 2)))
            F(3 * t + 2).append(rdw(t, 1, 0))
            F(3 * t + 3).append(rdw(t, 1, 1))
        F(2).insert(0, ("wait", wf(1)))
        for j in range(3):
            F(3 * j + 4).append(rdx(1, j))
        F(23).insert(0, ("wait", wf(0, 1) | regs_of(a_(XF(1, 0), 12))))
        b = 24
        F(b + 1).append(f"s_add_u32 s{S_SLOT}, s{S_SLOT}, 1")
        F(b + 2).append(f"s_cmp_eq_u32 s{S_SLOT}, 3")
        F(b + 3).append(f"s_cselect_b32 s{S_T0}, {(-2 * QSLOT) & 0xffffffff}, s{S_T1}")
        F(b + 4).append(f"s_cselect_b32 s{S_SLOT}, 0, s{S_SLOT}")
        F(b + 4).extend([add(AW(0)), add(AW(1))])
        F(b + 5).extend([("wait0",), "s_barrier"])
        F(b + 6).extend([rdw(0, 0, 0), add(AX(0))])
        F(b + 7).extend([rdw(0, 0, 1), add(AW(2))])
        F(b + 8).extend([rdx(0, 0), rdw(1, 0, 0)])
        F(b + 9).extend([rdx(0, 1), rdw(1, 0, 1)])
        F(b + 10).extend([rdx(0, 2), add(AX(1))])
        F(b + 11).extend([rdw(2, 0, 0), add(AW(3))])
        F(b + 12).extend([rdw(2, 0, 1), add(AW(4))])
        F(b + 13).extend([rdw(3, 0, 0), add(AW(5))])
        F(b + 14).extend([rdw(3, 0, 1), add(AW(6))])
        F(b + 15).extend([rdw(4, 0, 0), add(AW(7))])
        F(b + 16).append(rdw(4, 0, 1))
        F(b + 17).append(rdw(5, 0, 0))
        F(b + 18).append(rdw(5, 0, 1))
        F(b + 19).append(f"s_sub_u32 s{S_CNT}, s{S_CNT}, 1")
        F(b + 20).extend([f"s_cmp_lg_u32 s{S_CNT}, 0", rdw(6, 0, 0)])
        F(b + 21).append(rdw(6, 0, 1))
        F(b + 22).append(("wait", wf(0) | regs_of(a_(XF(0, 0), 12))))
        F(b + 23).extend([rdw(7, 0, 0), rdw(7, 0, 1)])

        e(f"s_mov_b32 s{S_SLOT}, 0\ns_mov_b32 s{S_T1}, {QSLOT}\ns_mov_b32 s{S_CNT}, 10")
        e("s_barrier")
        first = [rdw(0, 0, 0), rdw(0, 0, 1), rdx(0, 0), rdw(1, 0, 0), rdx(0, 1), rdw(1, 0, 1), rdx(0, 2)]
        for t in range(2, 8):
            first += [rdw(t, 0, 0), rdw(t, 0, 1)]
        for x in first:
            self.ds(x[1])
        self.lwait(wf(0) | regs_of(a_(XF(0, 0), 12)))
        entry = [set(x) for x in self.lq]
        e(".p2align 3")
        e("L_q:")
        self.strict = True
        if self.o.get("q_nomfma"):
            for k in range(len(M)):
                M[k] = (v(S_(0, 0), 4), M[k][1], M[k][2], v(S_(0, 0), 4))
        self.stream(M, fill)
        self.strict = False
        assert [set(x) for x in self.lq] == entry, "loop-carried LDS queue differs"
        e("s_cbranch_scc1 L_q")
        self.lwait0()
        for s in range(4):
            for u in range(2):
                self.ds(f"ds_read_b128 {a_(KF(u, s), 4)}, v{AK(s)} offset:{u * 4096}")
        c = math.log2(math.e) / math.sqrt(128.0)
        e(f"s_mov_b32 s{S_RET}, {f2u(c):#x}\ns_mov_b32 s{S_RET + 1}, {f2u(c):#x}\ns_mov_b32 s{S_CNT}, 8")

        def prep(j):
            ops = []
            for r in range(O_(j, 0), O_(j, 0) + 32, 2):
                ops.append(f"v_pk_mul_f32 v[{r}:{r + 1}], v[{r}:{r + 1}], s[{S_RET}:{S_RET + 1}]")
            for s in range(4):
                ops += self.pack_ops(j, s)
            for r in range(O_(j, 0), O_(j, 0) + 32, 2):
                ops.append(f"v_mov_b64 v[{r}:{r + 1}], 0")
            for s in range(4):
                q = Q_(j, s)
                ops += [f"v_permlane16_swap_b32 v{q}, v{q + 2}", f"v_permlane16_swap_b32 v{q + 1}, v{q + 3}"]
            return ops

        def ref(j):
            ops = self.rowmax(j)
            ops += [f"v_sub_f32 v{NM(j) + r}, 0, v1" for r in range(4)]
            return ops

        def with_qk(j, ops):
            M = [(d, a, b, "0" if c == v(NM(j), 4) else c) for d, a, b, c in self.qk(j)]
            fill = {k: ops[2 * k:2 * k + 2] for k in range(7)}
            fill[7] = ops[14:]
            self.stream(M, fill)

        for x in prep(0) + ["s_nop 0"]:
            e(x)
        with_qk(0, prep(1) + ["s_nop 0"])
        with_qk(1, prep(2) + ["s_nop 0"])
        zero_v = [f"v_accvgpr_write_b32 a{VF(0) + r}, 0" for r in range(32)]
        with_qk(2, zero_v[:16] + ref(0) + [f"v_sub_f32 v{S_(0, 0) + k}, v{S_(0, 0) + k}, v1" for k in range(8)])
        for x in ref(1) + zero_v[16:] + ref(2):
            e(x)

    def rowmax(self, j):
        s0 = S_(j, 0)
        return [f"v_max3_f32 v1, v{s0}, v{s0 + 1}, v{s0 + 2}", f"v_max3_f32 v1, v1, v{s0 + 3}, v{s0 + 4}",
                f"v_max3_f32 v1, v1, v{s0 + 5}, v{s0 + 6}", f"v_max_f32 v1, v1, v{s0 + 7}",
                "v_mov_b32 v2, v1", "s_nop 1", "v_permlane16_swap_b32 v1, v2", "v_max_f32 v1, v1, v2",
                "v_mov_b32 v2, v1", "s_nop 1", "v_permlane32_swap_b32 v1, v2", "v_max_f32 v1, v1, v2",
                "v_add_f32 v1, 0x40e00000, v1"]

    def pack_ops(self, j, s):
        q = Q_(j, s)
        return [f"v_cvt_pk_bf16_f32 v{q + n}, v{O_(j, 2 * s) + 2 * n}, v{O_(j, 2 * s) + 2 * n + 1}" for n in range(4)]

    def qk(self, j):
        out = []
        for s in range(4):
            for u in range(2):
                c = v(NM(j), 4) if s == 0 else v(S_(j, u), 4)
                out.append((v(S_(j, u), 4), a_(KF(u, s), 4), v(Q_(j, s), 4), c))
        return out

    def pv(self, j):
        out = [(v(O_(j, t), 4), a_(VF(t), 4), v(P_(j), 4), v(O_(j, t), 4)) for t in range(8)]
        out.append((v(L_(j), 4), v(ONES, 4), v(P_(j), 4), v(L_(j), 4)))
        return out

    def site(self, target):
        k = len(self.sites)
        self.sites.append(target)
        return f"s_cbranch_vccnz L_stub{k}\nL_ret{k}:"

    def sm_ops(self, j):
        X = [f"v_exp_f32 v{E_ + k}, v{S_(j, 0) + k}" for k in range(8)]
        C = [f"v_cvt_pk_bf16_f32 v{P_(j) + k}, v{E_ + 2 * k}, v{E_ + 2 * k + 1}" for k in range(4)]
        p = P_(j)
        K = [f"v_or3_b32 v{V_ACC}, v{p}, v{p + 1}, v{p + 2}",
             f"v_bitop3_b32 v{V_ACC}, v{V_ACC}, v{p + 3}, s{S_MASK} bitop3:0xa8",
             f"v_cmp_ne_u32 vcc, 0, v{V_ACC}",
             self.site(f"L_rare{j}")]
        return X, C, K

    def tile(self, a):
        M = self.qk(1) + self.pv(2) + self.qk(2) + self.pv(0) + self.qk(0) + self.pv(1)
        X0, C0, K0 = self.sm_ops(0)
        X1, C1, K1 = self.sm_ops(1)
        X2, C2, K2 = self.sm_ops(2)

        def rv(t, hh):
            return ("ds", f"ds_read_b64_tr_b16 {a_(VF(t) + 2 * hh, 2)}, v{AV(t)} offset:{a * 16384 + hh * 4096}")

        def rk(k):
            u, s = k & 1, k >> 1
            return ("ds", f"ds_read_b128 {a_(KF(u, s), 4)}, v{AK(s)} offset:{((a + 1) & 3) * 16384 + u * 4096}")

        kf = lambda *ks: set().union(*[regs_of(a_(KF(k & 1, k >> 1), 4)) for k in ks])
        flip = lambda r: f"v_xor_b32 v{r}, 0x10000, v{r}"
        fill = {
            0: [X0[7]], 1: [C0[0], C0[1]], 2: [C0[2], C0[3]], 3: [K0[0], K0[1]],
            4: [K0[2], f"v_add_u32 v{V_P}, 1, v{V_P}"],
            5: [("wait0",), ("ds", f"ds_write_b32 v{V_PA}, v{V_P}")],
            6: [K0[3], f"v_cmp_gt_u32 vcc, s{S_NEED}, v{V_L}"], 7: [],
            8: [self.site("L_spin"), rv(0, 0)],
            9: [f"s_add_u32 s{S_NEED}, s{S_NEED}, 1", rv(0, 1), rv(1, 0)], 10: [rv(1, 1), rv(2, 0)], 11: [X1[0]],
            12: [rv(2, 1), rv(3, 0)], 13: [X1[1]], 14: [rv(3, 1), rv(4, 0)], 15: [X1[2]],
            16: [rv(4, 1), rv(5, 0)], 17: [X1[3]], 18: [rv(5, 1), C1[0]], 19: [rv(6, 0), C1[1]],
            20: [X1[4]], 21: [rv(6, 1), rv(7, 0)], 22: [X1[5]], 23: [rv(7, 1), rk(0)],
            24: [("wait", regs_of(a_(VF(0), 24))), X1[6]], 25: [rk(1), rk(2)], 26: [X1[7]],
            27: [rk(3), C1[2]], 28: [rk(4), C1[3]], 29: [rk(5), K1[0]],
            30: [("wait", regs_of(a_(VF(6), 8))), rk(6), K1[1]], 31: [rk(7), K1[2]], 32: [X2[0]],
            33: [K1[3], ("wait", kf(0, 1, 2, 3)), X2[1]],
            34: [X2[2]], 35: [X2[3]], 36: [X2[4]], 37: [("wait", kf(4, 5, 6, 7)), X2[5]], 38: [X2[6]], 39: [X2[7]],
            40: [C2[0], C2[1]], 41: [C2[2], C2[3]], 42: [K2[0], K2[1]],
            43: [("ds", f"ds_read_b32 v{V_L}, v{V_LA}"), K2[2]],
            44: [X0[0]], 45: [K2[3], X0[1]], 46: [X0[2]], 47: [X0[3]], 48: [X0[4]], 49: [X0[5]], 50: [X0[6]],
        }
        if a == 0:
            fill[5].append(flip(AV(0)))
            fill[6].append(flip(AV(1)))
            fill[7] += [flip(AV(2)), flip(AV(3))]
            fill[8].append(flip(AV(4)))
            fill[11].append(flip(AV(5)))
            fill[13].append(flip(AV(6)))
            fill[15].append(flip(AV(7)))
        if a == 3:
            fill[5].append(flip(AK(0)))
            fill[6].append(flip(AK(1)))
            fill[7] += [flip(AK(2)), flip(AK(3))]
            fill[31].insert(0, f"s_sub_u32 s{S_CNT}, s{S_CNT}, 1")
            fill[33] = fill[33][:1] + [f"s_cmp_eq_u32 s{S_CNT}, 0", "s_cbranch_scc1 L_att_tail"] + fill[33][1:]
        self.stream(M, fill)

    def attention(self):
        e, o = self.e, self.o
        assert not self.lq
        self.ds(f"ds_read_b32 v{V_L}, v{V_LA}")
        for k in range(7):
            e(f"v_exp_f32 v{E_ + k}, v{S_(0, 0) + k}")
        self.stamp("att0", "c")
        entry = [set(x) for x in self.lq]
        e(".p2align 3")
        e("L_att:")
        self.strict = True
        for a in range(4):
            self.tile(a)
        self.strict = False
        assert [set(x) for x in self.lq] == entry
        e("s_branch L_att")
        e("L_att_tail:")
        self.stamp("att1", "c")
        e(f"v_mov_b32 v{V_TAG + 2}, 0\nv_mov_b32 v{V_P}, 33")
        e(f"buffer_load_dwordx2 {v(V_TAG, 2)}, v{V_TAG + 2}, {srd_(SRD_DBG)}, 0 offen sc1")
        self.lwait0()
        self.ds(f"ds_write_b32 v{V_PA}, v{V_P}")
        X2, C2, K2 = self.sm_ops(2)
        fill = {k: [X2[k + 1]] for k in range(7)}
        fill[7] = [C2[0], C2[1]]
        fill[8] = [C2[2], C2[3], K2[0], K2[1], K2[2]]
        self.stream(self.pv(1), fill)
        e(f"s_mul_i32 s{S_OB}, s{S_B}, 9\ns_mul_i32 s{S_T1}, s{S_WAVE}, 3\ns_add_u32 s{S_OB}, s{S_OB}, s{S_T1}")
        e(f"s_lshl_b32 s{S_OB}, s{S_OB}, 5\ns_add_u32 s{S_T0}, s{S_OB}, s{S_H}\ns_lshl_b32 s{S_T0}, s{S_T0}, 12")
        e(K2[3])
        e("v_lshlrev_b32 v1, 4, v0")

        def norm(j):
            ops = [f"v_rcp_f32 v2, v{L_(j)}", f"v_rcp_f32 v3, v{L_(j)}", "s_nop 0"]
            for s in range(4):
                for r in range(O_(j, 2 * s), O_(j, 2 * s) + 8, 2):
                    ops.append(f"v_pk_mul_f32 v[{r}:{r + 1}], v[{r}:{r + 1}], v[2:3]")
                ops += self.pack_ops(j, s)
                ops.append(f"buffer_store_dwordx4 {v(Q_(j, s), 4)}, v1, {srd_(SRD_WS)}, s{S_T0} offen offset:{s * 1024} sc1")
            ops.append(f"s_add_u32 s{S_T0}, s{S_T0}, {32 * 4096}")
            return ops

        n0 = norm(0)
        fill = {k: n0[2 * k:2 * k + 2] for k in range(8)}
        fill[8] = n0[16:]
        self.stream(self.pv(2), fill)
        for j in (1, 2):
            for x in norm(j):
                e(x)
        self.stamp("stored", "c")

    def rare(self):
        e = self.e
        for k, target in enumerate(self.sites):
            e(f"L_stub{k}:\ns_call_b64 s[{S_RET}:{S_RET + 1}], {target}\ns_branch L_ret{k}")
        e("L_spin:")
        e(f"s_mov_b32 s{S_SPIN}, 0")
        e("L_spin1:")
        e(f"ds_read_b32 v{V_L}, v{V_LA}\ns_add_u32 s{S_SPIN}, s{S_SPIN}, 1\ns_waitcnt lgkmcnt(0)")
        e(f"v_cmp_gt_u32 vcc, s{S_NEED}, v{V_L}\ns_cmp_ge_u32 s{S_SPIN}, {SPIN_MAX}\ns_cbranch_scc1 L_spin2")
        e("s_cbranch_vccnz L_spin1")
        e("L_spin2:")
        e(f"s_setpc_b64 s[{S_RET}:{S_RET + 1}]")
        for j in range(3):
            s0 = S_(j, 0)
            e(f"L_rare{j}:")
            e("s_nop 7")
            for x in self.rowmax(j):
                e(x)
            e("v_max_f32 v1, 0, v1")
            e("v_exp_f32 v2, -v1\nv_exp_f32 v3, -v1\ns_nop 0")
            for r in list(range(O_(j, 0), O_(j, 0) + 32, 2)) + [L_(j), L_(j) + 2]:
                e(f"v_pk_mul_f32 v[{r}:{r + 1}], v[{r}:{r + 1}], v[2:3]")
            for r in range(4):
                e(f"v_sub_f32 v{NM(j) + r}, v{NM(j) + r}, v1")
            for k in range(8):
                e(f"v_sub_f32 v{s0 + k}, v{s0 + k}, v1")
            for k in range(8):
                e(f"v_exp_f32 v{s0 + k}, v{s0 + k}")
            e("s_nop 0")
            for k in range(4):
                e(f"v_cvt_pk_bf16_f32 v{P_(j) + k}, v{s0 + 2 * k}, v{s0 + 2 * k + 1}")
            e("s_nop 1")
            e(f"s_setpc_b64 s[{S_RET}:{S_RET + 1}]")

    def poll(self, name, areg, soff):
        e = self.e
        e(f"s_mov_b32 s{S_SPIN}, 0")
        e(f"L_{name}:")
        e(f"buffer_load_dwordx2 v[2:3], v{areg}, {srd_(SRD_WS)}, s{soff} offen sc1")
        e(f"s_add_u32 s{S_SPIN}, s{S_SPIN}, 1\ns_waitcnt vmcnt(0)\nv_cmp_ne_u64 vcc, s[{S_TAG}:{S_TAG + 1}], v[2:3]")
        e(f"s_cmp_ge_u32 s{S_SPIN}, 0x40000\ns_cbranch_scc1 L_{name}_end")
        e(f"s_cbranch_vccz L_{name}_end\ns_sleep {self.o.get('psleep', 1)}\ns_branch L_{name}")
        e(f"L_{name}_end:")

    def signal(self, soff, areg=V_TAG + 2, mask=1):
        e = self.e
        e(f"s_mov_b64 exec, {mask}")
        e(f"buffer_store_dwordx2 {v(V_TAG, 2)}, v{areg}, {srd_(SRD_WS)}, s{soff} offen sc1")
        e("s_mov_b64 exec, -1")

    def projection(self):
        e, o = self.e, self.o
        ACC = lambda c, j: 16 + 12 * c + 4 * j
        WO = lambda c: 4 * c
        DEPTH = 8
        OF = lambda n, j: 32 + 12 * (n % DEPTH) + 4 * j
        OA = 11

        def rw(n, c, hh):
            p = phys(n)
            return ("ds", f"ds_read_b64_tr_b16 {a_(WO(c) + 2 * hh, 2)}, v{RW + p // 12} offset:{(p % 12) * KSTEP + hh * 2560 + c * 32}")

        def ldo(n, j):
            r = []
            if n % 4 == 0 and j == 0:
                r += [f"s_add_u32 s{S_T1}, s{S_I}, {n >> 2}", f"s_and_b32 s{S_T1}, s{S_T1}, 7",
                      f"s_lshl_b32 s{S_T1}, s{S_T1}, 12", f"s_add_u32 s{S_XO}, s{S_OB}, s{S_T1}"]
            r.append(f"buffer_load_dwordx4 {a_(OF(n, j), 4)}, v{OA + j}, {srd_(SRD_WS)}, s{S_XO} offen offset:{(n & 3) * 1024} sc1")
            return r

        def kstep(n, last):
            M, fill = [], {}
            for c in range(5):
                for j in range(3):
                    b = v(Q_(j, n), 4) if n < 4 else a_(OF(n, j), 4)
                    M.append((v(ACC(c, j), 4), a_(WO(c), 4), b, "0" if n == 0 else v(ACC(c, j), 4)))
                if not last:
                    fill[3 * c + 2] = [rw(n + 1, c, 0)]
                    if c < 4:
                        fill[3 * c + 3] = [rw(n + 1, c, 1)]
                    else:
                        fill[14].append(rw(n + 1, c, 1))
            return M, fill

        def waits(fill):
            for c, cs in ((0, (1, 2)), (2, (3, 4))):
                regs = set().union(*[regs_of(a_(WO(x), 4)) for x in cs])
                fill.setdefault(3 * c + 1, []).insert(0, ("wait", regs))
            fill.setdefault(13, []).insert(0, ("wait", regs_of(a_(WO(0), 4))))

        self.lq = []
        e(f"s_mov_b32 s{S_NEED}, 33\ns_call_b64 s[{S_RET}:{S_RET + 1}], L_spin")
        e(f"v_mov_b32 v{V_P}, 34")
        self.ds(f"ds_write_b32 v{V_PA}, v{V_P}")
        for c in range(5):
            for hh in range(2):
                self.ds(rw(0, c, hh)[1])
        e(f"s_lshl3_add_u32 s{S_OB}, s{S_KG}, s{S_OB}\ns_lshl_b32 s{S_OB}, s{S_OB}, 12")
        e(f"v_add_u32 v{OA + 1}, {32 * 4096}, v1\nv_add_u32 v{OA + 2}, {64 * 4096}, v1\nv_mov_b32 v{OA}, v1")
        self.lwait(regs_of(a_(WO(0), 4)))
        for n in range(4):
            M, fill = kstep(n, n == 3)
            waits(fill)
            self.stream(M, fill)
        self.stamp("own_done", "c")
        e(f"s_waitcnt vmcnt(0)\ns_mov_b32 s{S_SPIN}, 0")
        e("L_tag:")
        e(f"v_readfirstlane_b32 s{S_TAG + 1}, v{V_TAG + 1}\nv_readfirstlane_b32 s{S_TAG}, v{V_TAG}")
        e(f"s_lshl2_add_u32 s{S_T0}, s{S_BH}, s{S_WAVE}\ns_cmp_lg_u32 s{S_TAG + 1}, 0\ns_cbranch_scc1 L_tag_ok")
        e(f"s_add_u32 s{S_SPIN}, s{S_SPIN}, 1\ns_cmp_ge_u32 s{S_SPIN}, 0x40000\ns_cbranch_scc1 L_tag_ok\ns_sleep 8")
        e(f"buffer_load_dwordx2 {v(V_TAG, 2)}, v{V_TAG + 2}, {srd_(SRD_DBG)}, 0 offen sc1")
        e("s_waitcnt vmcnt(0)\ns_branch L_tag")
        e("L_tag_ok:")
        e(f"s_lshl_b32 s{S_T0}, s{S_T0}, 7\ns_add_u32 s{S_T0}, s{S_T0}, {FLAG_A}")
        self.signal(S_T0)
        self.stamp("flag_a", "c")
        e("s_barrier")
        self.lwait0()
        for c in range(5):
            for hh in range(2):
                self.ds(rw(4, c, hh)[1])
        e("v_and_b32 v14, 7, v0\nv_lshlrev_b32 v14, 9, v14")
        e(f"s_lshl_b32 s{S_T1}, s{S_I}, 9\ns_sub_u32 s{S_T0}, s{S_T0}, s{S_T1}")
        self.stamp("bar_b", "c")
        self.poll("polla", 14, S_T0)
        self.stamp("poll_a", "c")
        for n in range(4, 4 + DEPTH):
            for j in range(3):
                for x in ldo(n, j):
                    e(x)
        self.lwait0()
        e(f"s_waitcnt vmcnt({3 * DEPTH - 3})")
        for n in range(4, 32):
            M, fill = kstep(n, n == 31)
            waits(fill)
            if n + DEPTH < 32:
                for j in range(3):
                    fill.setdefault(12 + j, []).extend(ldo(n + DEPTH, j))
            if n < 31:
                fill.setdefault(14, []).append(f"s_waitcnt vmcnt({3 * (min(DEPTH, 31 - n) - 1)})")
            self.stream(M, fill)
        self.stamp("mfma_done", "c")
        e(f"s_lshl3_add_u32 s{S_PB}, s{S_B}, s{S_I}")
        if o.get("fcopy"):
            e(f"s_lshl_b32 s{S_T2}, s{S_PB}, 6\ns_add_u32 s{S_T2}, s{S_T2}, s{S_WAVE}\ns_lshl_b32 s{S_T2}, s{S_T2}, 7")
        else:
            e(f"s_lshl2_add_u32 s{S_T2}, s{S_PB}, s{S_KG}\ns_lshl2_add_u32 s{S_T2}, s{S_T2}, s{S_WAVE}\ns_lshl_b32 s{S_T2}, s{S_T2}, 7")
        e(f"s_add_u32 s{S_N}, s{S_T2}, {FLAG_B}")
        e(f"s_mul_i32 s{S_PB}, s{S_PB}, {16 * 12288}\ns_lshl_b32 s{S_T0}, s{S_WAVE}, 12\ns_add_u32 s{S_PB}, s{S_PB}, s{S_T0}\ns_add_u32 s{S_PB}, s{S_PB}, {PART}")
        e(f"s_mul_i32 s{S_T0}, s{S_KG}, 12288\ns_add_u32 s{S_XO}, s{S_PB}, s{S_T0}")
        for c in range(3):
            e(f"s_add_u32 s{S_T0}, s{S_KG}, {c + 1}\ns_and_b32 s{S_T0}, s{S_T0}, 3\ns_mul_i32 s{S_T0}, s{S_T0}, {4 * 12288}\ns_add_u32 s{S_T0}, s{S_T0}, s{S_XO}")
            for j in range(3):
                e(f"buffer_store_dwordx4 {v(ACC(c, j), 4)}, v1, {srd_(SRD_WS)}, s{S_T0} offen offset:{j * 1024} sc1")
        for j in range(3):
            e(f"s_add_u32 s{S_T0}, s{S_XO}, {j * 4 * 12288}")
            e(f"buffer_store_dwordx4 {v(ACC(4, j), 4)}, v1, {srd_(SRD_WS)}, s{S_T0} offen offset:3072 sc1")
        e("v_and_b32 v14, 3, v0\nv_lshlrev_b32 v14, 9, v14")
        e(f"s_mul_i32 s{S_T0}, s{S_KG}, {4 * 12288}\ns_add_u32 s{S_PB}, s{S_PB}, s{S_T0}")
        e("v_and_b32 v15, 15, v0\nv_mul_u32_u24 v15, 1280, v15\nv_lshrrev_b32 v4, 4, v0\nv_lshl_add_u32 v15, v4, 3, v15")
        e("s_waitcnt vmcnt(0)")
        if o.get("fcopy"):
            e(f"v_lshlrev_b32 v4, 2, v14\ns_lshl_b32 s{S_T1}, s{S_KG}, 9\ns_add_u32 s{S_T1}, s{S_T1}, s{S_N}")
            self.signal(S_T1, 4, 15)
            self.stamp("flag_b", "c")
            e(f"s_lshl_b32 s{S_T1}, s{S_KG}, 11\ns_add_u32 s{S_N}, s{S_N}, s{S_T1}")
        else:
            self.signal(S_N)
            self.stamp("flag_b", "c")
            e(f"s_lshl_b32 s{S_T1}, s{S_KG}, 9\ns_sub_u32 s{S_N}, s{S_N}, s{S_T1}")
        self.poll("pollb", 14, S_N)
        self.stamp("poll_b", "c")
        RB = lambda m, sl: 76 + 16 * m + 4 * sl
        for m in range(4):
            e(f"s_add_u32 s{S_T0}, s{S_KG}, {m}\ns_and_b32 s{S_T0}, s{S_T0}, 3\ns_mul_i32 s{S_T0}, s{S_T0}, 12288\ns_add_u32 s{S_T0}, s{S_T0}, s{S_PB}")
            for sl in range(4):
                if m or sl == 3:
                    e(f"buffer_load_dwordx4 {v(RB(m, sl), 4)}, v1, {srd_(SRD_WS)}, s{S_T0} offen offset:{sl * 1024} sc1")
        e(f"s_mul_i32 s{S_T0}, s{S_B}, 3\ns_add_u32 s{S_T0}, s{S_T0}, s{S_WAVE}\ns_mul_i32 s{S_T0}, s{S_T0}, {48 * 1280}")
        e(f"s_mul_i32 s{S_T1}, s{S_I}, 160\ns_add_u32 s{S_T0}, s{S_T0}, s{S_T1}")
        e(f"s_mul_i32 s{S_T1}, s{S_KG}, {16 * 1280}\ns_add_u32 s{S_T1}, s{S_T1}, s{S_T0}\ns_add_u32 s{S_T1}, s{S_T1}, 128")
        e(f"s_cmp_eq_u32 s{S_KG}, 3\ns_cselect_b32 s{S_T1}, 0x7000000, s{S_T1}")
        e(f"s_lshl_b32 s{S_T2}, s{S_KG}, 5\ns_add_u32 s{S_T0}, s{S_T0}, s{S_T2}")
        e("s_waitcnt vmcnt(0)")
        for sl in range(4):
            a0 = ACC(3, sl) if sl < 3 else RB(0, 3)
            for r in (0, 2):
                e(f"v_pk_add_f32 {v(a0 + r, 2)}, {v(a0 + r, 2)}, {v(RB(1, sl) + r, 2)}")
                e(f"v_pk_add_f32 {v(RB(2, sl) + r, 2)}, {v(RB(2, sl) + r, 2)}, {v(RB(3, sl) + r, 2)}")
            for r in (0, 2):
                e(f"v_pk_add_f32 {v(a0 + r, 2)}, {v(a0 + r, 2)}, {v(RB(2, sl) + r, 2)}")
            e(f"v_cvt_pk_bf16_f32 v{RB(1, sl)}, v{a0}, v{a0 + 1}\nv_cvt_pk_bf16_f32 v{RB(1, sl) + 1}, v{a0 + 2}, v{a0 + 3}")
            e(f"buffer_store_dwordx2 {v(RB(1, sl), 2)}, v15, {srd_(SRD_OUT)}, s{S_T0 if sl < 3 else S_T1} offen")
            if sl < 2:
                e(f"s_add_u32 s{S_T0}, s{S_T0}, {16 * 1280}")
        if o["stamps"]:
            e("s_waitcnt vmcnt(0)")
            self.stamp("end", "c")
            e(f"s_cmp_lg_u32 s{S_WAVE}, {o.get('swave', 0)}\ns_cbranch_scc1 L_end")
            self.stamp_store("c")
        e("L_end:\ns_endpgm")

    def build(self):
        self.sites = []
        self.prologue()
        self.loader()
        self.lq = []
        self.compute_setup()
        self.qphase()
        self.attention()
        self.projection()
        self.rare()
        self.e("L_code_end:")
        self.expand_stamps()
        bad = check(self.L)
        assert bad == 0, f"{bad} hazards"
        hdr = open("cdna_kernels/" + NAME + ".s.ref").read().split("; Override launch")[0]
        txt = hdr
        txt += "; @launch grid=(256,1,1) block=(256,1,1) lds=163840\n"
        if self.stamps:
            txt += "; stamps: " + " ".join(x[0] for x in self.stamps) + "\n"
        txt += f""".amdgcn_target "amdgcn-amd-amdhsa--gfx950"
.text
.globl {NAME}_kernel
.p2align 8
.type {NAME}_kernel,@function
{NAME}_kernel:
"""
        for ln in self.L:
            txt += (ln if ln.endswith(":") else "    " + ln) + "\n"
        txt += f"""
.section .rodata,"a"
.p2align 6
.amdhsa_kernel {NAME}_kernel
  .amdhsa_next_free_vgpr 512
  .amdhsa_next_free_sgpr 102
  .amdhsa_accum_offset 256
  .amdhsa_group_segment_fixed_size 0
  .amdhsa_kernarg_size 64
  .amdhsa_user_sgpr_count 2
  .amdhsa_user_sgpr_kernarg_segment_ptr 1
  .amdhsa_system_sgpr_workgroup_id_x 1
  .amdhsa_float_denorm_mode_32 3
.end_amdhsa_kernel
"""
        return txt


def main():
    out = sys.argv[1]
    kw = {}
    for arg in sys.argv[2:]:
        k, val = arg.split("=", 1)
        if val in ("True", "False"):
            val = val == "True"
        elif val.lstrip("-").isdigit() and k not in ("mapping",):
            val = int(val)
        kw[k] = val
    g = Gen(**kw)
    txt = g.build()
    open(out, "w").write(txt)
    print(out, "lines", len(g.L), "stamps", [x[0] for x in g.stamps])


if __name__ == "__main__":
    main()
```

```python
import math
import struct
import sys

from hazard import check, regs_of

NAME = "standalone__mha_block_cached__near_ridge"
STAMP_OFF = 0x8000000
LANE_OFF = 0x4000000
FLAG_A = 0x1000000
FLAG_B = 0x1100000
PART = 0x1400000
SPIN_MAX = 0x100000

DEFAULTS = dict(
    stamps=False,
    kvpol="nt",
    qpol="",
    wpol="",
    rot=2,
    pf_code=True,
    kvq=8,
)

def f2u(x):
    return struct.unpack("<I", struct.pack("<f", x))[0]


def v(a, n=1):
    return f"v{a}" if n == 1 else f"v[{a}:{a + n - 1}]"


def a_(a, n=1):
    return f"a{a}" if n == 1 else f"a[{a}:{a + n - 1}]"


def srd_(d):
    return f"s[{d}:{d + 3}]"


S_WAVE = 3
SRD_K, SRD_V, SRD_X, SRD_WQ, SRD_WO, SRD_DBG, SRD_WS, SRD_OUT = 20, 24, 28, 32, 36, 40, 44, 48
S_H, S_B, S_BH = 52, 53, 54
S_T0, S_T1, S_T2 = 55, 56, 57
S_RET = 58
S_CNT, S_SLOT, S_NEED, S_MASK = 60, 61, 62, 63
S_J, S_KG, S_I, S_SPIN = 64, 65, 66, 67
S_N, S_MINP, S_PUB, S_FULL = 68, 69, 70, 71
S_C, S_XO, S_WO_, S_REQ, S_OB, S_PB = 72, 73, 74, 75, 76, 77
S_STAMP = 4
SRD_CODE = 96
S_TAG = 100

SYNC = 163840 - 1024
QSLOT = 34816
QS0 = SYNC - 3 * QSLOT
QEND = SYNC
KSTEP = 5120

O_ = lambda j, t: 16 + 32 * j + 4 * t
L_ = lambda j: 112 + 4 * j
NM = lambda j: 124 + 4 * j
S_ = lambda j, u: 136 + 8 * j + 4 * u
E_ = 160
P_ = lambda j: 168 + 4 * j
Q_ = lambda j, s: 180 + 16 * j + 4 * s
AK = lambda s: 228 + s
AV = lambda t: 232 + t
AW = lambda t: 240 + t
AX = lambda s: 248 + s
V_ACC = 250
ONES = 252
V_TAG = 240
V_LA, V_L, V_PA, V_P = 4, 5, 6, 7
RW = 8
KF = lambda u, s: 16 * u + 4 * s
VF = lambda t: 32 + 4 * t
WF = lambda t: 4 * t
XF = lambda p, j: 32 + 12 * p + 4 * j


def phys(n):
    return 26 + n if n < 5 else (n - 5 if n < 31 else 31)


class Gen:
    def __init__(self, **kw):
        self.o = dict(DEFAULTS)
        self.o.update(kw)
        self.L = []
        self.lq = []
        self.vq = []
        self.stamps = []
        self.strict = False

    def e(self, s):
        for ln in s.split("\n"):
            ln = ln.strip()
            if ln:
                self.L.append(ln)

    def ds(self, text):
        self.e(text)
        dst = text.split(None, 1)[1].split(",")[0]
        self.lq.append(regs_of(dst) if "read" in text.split()[0] else set())

    def lwait(self, regs):
        idx = -1
        for i, d in enumerate(self.lq):
            if d & regs:
                idx = i
        if idx < 0:
            return False
        n = min(len(self.lq) - 1 - idx, 15)
        self.e(f"s_waitcnt lgkmcnt({n})")
        self.lq = self.lq[len(self.lq) - n:] if n else []
        return True

    def lwait0(self):
        self.e("s_waitcnt lgkmcnt(0)")
        self.lq = []

    def vwait(self, tag):
        if tag not in self.vq:
            return
        idx = max(i for i, t in enumerate(self.vq) if t == tag)
        n = min(len(self.vq) - 1 - idx, 63)
        self.e(f"s_waitcnt vmcnt({n})")
        self.vq = self.vq[len(self.vq) - n:] if n else []

    def mfma(self, d, a, b, c):
        w = self.lwait(regs_of(a) | regs_of(b))
        assert not (w and self.strict), f"unplanned wait before mfma {d} {a} {b}"
        self.e(f"v_mfma_f32_16x16x32_bf16 {d}, {a}, {b}, {c}")

    def stream(self, M, fill):
        for k, m in enumerate(M):
            self.mfma(*m)
            for x in fill.get(k, []):
                if isinstance(x, str):
                    self.e(x)
                elif x[0] == "ds":
                    self.ds(x[1])
                elif x[0] == "wait":
                    self.lwait(x[1])
                else:
                    self.lwait0()

    def stamp(self, name, role):
        if self.o["stamps"]:
            names = [name]
            if self.o.get("both") and name in self.o["both"].split(","):
                names.append(name + "_c")
            for nm in names:
                n = len([1 for x in self.stamps if x[2] == role])
                k = 78 + 2 * n if n < 8 else S_STAMP + 2 * (n - 8)
                op = "s_memtime" if (self.o.get("clk") or nm.endswith("_c")) else "s_memrealtime"
                self.e(f"{op} s[{k}:{k + 1}]")
                self.stamps.append((nm, k, role))

    def stamp_store(self, role):
        if self.o["stamps"]:
            self.e(f"@STAMPS {role}")

    def expand_stamps(self):
        out = []
        n = len(self.stamps)
        for ln in self.L:
            if ln.startswith("@STAMPS"):
                role = ln.split()[1]
                out.append("s_waitcnt lgkmcnt(0)")
                out += [f"s_mul_i32 s{S_T0}, s2, {n * 8}", f"s_add_u32 s{S_T0}, s{S_T0}, {STAMP_OFF}", "v_mov_b32 v3, 0"]
                for k, (_, r, ro) in enumerate(self.stamps):
                    if ro == role:
                        out += [f"v_mov_b32 v4, s{r}", f"v_mov_b32 v5, s{r + 1}",
                                f"buffer_store_dwordx2 v[4:5], v3, {srd_(SRD_WS)}, s{S_T0} offen offset:{8 * k}"]
            else:
                out.append(ln)
        self.L = out

    def srd(self, d, lo, off, size):
        if off:
            self.e(f"s_add_u32 s{d}, s{lo}, {off}\ns_addc_u32 s{d + 1}, s{lo + 1}, 0")
        else:
            self.e(f"s_mov_b32 s{d}, s{lo}\ns_mov_b32 s{d + 1}, s{lo + 1}")
        if size is not None:
            self.e(f"s_mov_b32 s{d + 2}, {size}")
        self.e(f"s_mov_b32 s{d + 3}, 0x20000")

    def code_srd(self):
        e = self.e
        n = getattr(self, "npc", 0)
        self.npc = n + 1
        e(f"s_getpc_b64 s[{SRD_CODE}:{SRD_CODE + 1}]\nL_pc{n}:")
        e(f"s_sub_u32 s{SRD_CODE}, s{SRD_CODE}, L_pc{n}-{NAME}_kernel\ns_subb_u32 s{SRD_CODE + 1}, s{SRD_CODE + 1}, 0")
        e(f"s_mov_b32 s{SRD_CODE + 2}, L_code_end-{NAME}_kernel\ns_mov_b32 s{SRD_CODE + 3}, 0x20000")

    def prologue(self):
        e = self.e
        e("s_cmp_ge_u32 s2, 256\ns_cbranch_scc1 L_end")
        e("s_load_dwordx8 s[4:11], s[0:1], 0")
        e("s_load_dwordx8 s[12:19], s[0:1], 32")
        self.stamp("start", "l")
        if self.o.get("dly"):
            e("s_memrealtime s[94:95]")
        e("v_lshrrev_b32 v1, 6, v0")
        e("v_and_b32 v0, 63, v0")
        e(f"v_readfirstlane_b32 s{S_WAVE}, v1")
        e(f"s_and_b32 s{S_KG}, s2, 3\ns_bfe_u32 s{S_I}, s2, 0x30003\ns_lshr_b32 s{S_J}, s2, 3")
        e(f"s_and_b32 s{S_B}, s2, 4\ns_lshr_b32 s{S_T2}, s2, 6\ns_add_u32 s{S_B}, s{S_B}, s{S_T2}")
        e(f"s_lshl3_add_u32 s{S_H}, s{S_KG}, s{S_I}")
        e(f"s_cmp_lg_u32 s{S_WAVE}, 3\ns_cbranch_scc1 L_compute")

    def loader(self):
        e, o = self.e, self.o
        nq, nkv = o.get("q_noload"), o.get("kv_noload")
        WQA, XA, KA, VA, DA = 20, 24, 28, 32, 34
        e("v_lshrrev_b32 v1, 4, v0\nv_and_b32 v2, 15, v0\nv_lshrrev_b32 v3, 3, v0\nv_and_b32 v16, 7, v0")
        for b in range(0, 4, 2):
            e(f"v_or_b32 v17, {(b >> 1) << 2}, v1\nv_lshlrev_b32 v17, 1, v17\nv_xor_b32 v17, v17, v2\nv_lshlrev_b32 v17, 4, v17")
            e("v_lshl_add_u32 v17, v1, 13, v17")
            for bb in (b, b + 1):
                e(f"v_add_u32 v{WQA + bb}, {bb * 4 * 8192 - bb * 1024}, v17")
        e("v_mul_u32_u24 v18, 1280, v3")
        for b in range(2):
            e(f"v_or_b32 v17, {4 * b}, v1\nv_xor_b32 v17, v17, v16\nv_lshl_add_u32 v17, v17, 4, v18")
            for bb in (b, b + 2):
                e(f"v_add_u32 v{XA + bb}, {bb * 8 * 1280 - bb * 1024}, v17")
        if o["rot"] == 2:
            e(f"s_add_u32 s{S_C}, s{S_I}, s{S_T2}\ns_and_b32 s{S_C}, s{S_C}, 1\ns_mul_i32 s{S_C}, s{S_C}, 5")
        elif o["rot"] == 4:
            e(f"s_add_u32 s{S_C}, s{S_I}, s{S_T2}\ns_and_b32 s{S_C}, s{S_C}, 3\ns_mul_i32 s{S_C}, s{S_C}, 5")
            e(f"s_add_u32 s{S_C}, s{S_C}, 1\ns_lshr_b32 s{S_C}, s{S_C}, 1")
        else:
            e(f"s_mov_b32 s{S_C}, 0")
        e(f"s_mov_b32 s{S_SLOT}, {QS0}\ns_mul_i32 s{S_T1}, s{S_B}, 184320\ns_lshl_b32 s{S_T2}, s{S_H}, 8")
        e("s_waitcnt lgkmcnt(0)")
        self.srd(SRD_WQ, 10, f"s{S_T2}", None)
        e(f"s_sub_u32 s{SRD_WQ + 2}, {0 if nq else 5242880}, {0 if nq else 's' + str(S_T2)}")
        self.srd(SRD_X, 4, f"s{S_T1}", 0 if nq else 184320)
        e("s_branch L_ldq_go")

        e("L_qstep:")
        e(f"s_lshl_b32 s{S_WO_}, s{S_C}, 19\ns_lshl_b32 s{S_XO}, s{S_C}, 7")
        for a in range(5):
            if a < 4:
                e(f"s_add_u32 m0, s{S_SLOT}, {a * 4096}")
                e(f"s_add_u32 s{S_T0}, s{S_WO_}, {a * 16 * 8192}")
                for b in range(4):
                    e(f"buffer_load_dwordx4 v{WQA + b}, {srd_(SRD_WQ)}, s{S_T0} offen offset:{b * 1024} {o['qpol']} lds")
            e(f"s_add_u32 m0, s{S_SLOT}, {16384 + a * 4096}")
            e(f"s_add_u32 s{S_T0}, s{S_XO}, {a * 32 * 1280}")
            for b in range(4 if a < 4 else 2):
                e(f"buffer_load_dwordx4 v{XA + b}, {srd_(SRD_X)}, s{S_T0} offen offset:{b * 1024} {o['qpol']} lds")
        e(f"s_add_u32 s{S_C}, s{S_C}, 1\ns_cmp_eq_u32 s{S_C}, 10\ns_cselect_b32 s{S_C}, 0, s{S_C}")
        e(f"s_add_u32 s{S_SLOT}, s{S_SLOT}, {QSLOT}\ns_cmp_eq_u32 s{S_SLOT}, {QEND}\ns_cselect_b32 s{S_SLOT}, {QS0}, s{S_SLOT}")
        e(f"s_setpc_b64 s[{S_RET}:{S_RET + 1}]")

        def qstep(s):
            e(f"s_call_b64 s[{S_RET}:{S_RET + 1}], L_qstep")
            self.vq += [f"q{s}"] * 34

        def qbar(s):
            self.vwait(f"q{s}")
            e("s_barrier")

        def tile(srd, areg, nreg, soff, lds, tag):
            for a in range(2):
                if isinstance(lds, str):
                    e(f"s_add_u32 m0, {lds}, {a * 4096}\ns_add_u32 s{S_T0}, {soff}, {a * 4096}")
                else:
                    e(f"s_mov_b32 m0, {lds + a * 4096}\ns_mov_b32 s{S_T0}, {soff + a * 4096}")
                for b in range(4):
                    e(f"buffer_load_dwordx4 v{areg + b % nreg}, {srd_(srd)}, s{S_T0} offen offset:{b * 1024} {o['kvpol']} lds")
            self.vq += [tag] * 8

        K = lambda i: tile(SRD_K, KA, 4, i * 8192, (i & 7) * 16384, f"k{i}")
        V = lambda i: tile(SRD_V, VA, 2, i * 8192, (i & 7) * 16384 + 8192, f"v{i}")

        e("L_ldq_go:")
        self.stamp("go", "l")
        qstep(0)
        for b in range(4):
            e(f"v_or_b32 v17, {4 * b}, v1\nv_xor_b32 v17, v17, v2\nv_lshlrev_b32 v17, 4, v17\nv_lshl_add_u32 v{KA + b}, v1, 8, v17")
        for b in range(2):
            e(f"v_or_b32 v17, {4 * b}, v1\nv_lshlrev_b32 v17, 1, v17\nv_xor_b32 v17, v17, v2\nv_lshlrev_b32 v17, 4, v17\nv_lshl_add_u32 v{VA + b}, v1, 8, v17")
        e(f"s_lshl_b32 s{S_BH}, s{S_B}, 5\ns_add_u32 s{S_BH}, s{S_BH}, s{S_H}\ns_lshl_b32 s{S_T0}, s{S_BH}, 18")
        self.srd(SRD_K, 6, f"s{S_T0}", 0 if nkv else 0x40000)
        self.srd(SRD_V, 8, f"s{S_T0}", 0 if nkv else 0x40000)
        self.srd(SRD_WO, 12, None, 5242880)
        self.srd(SRD_WS, 18, None, 0x10000000)
        e(f"s_add_u32 s{S_T0}, s{S_KG}, 1")
        for n in range(5):
            e(f"v_add_u32 v16, {64 * n}, v0\nv_mul_u32_u24 v17, 6554, v16\nv_lshrrev_b32 v17, 16, v17")
            e("v_mul_u32_u24 v18, 10, v17\nv_sub_u32 v16, v16, v18\nv_lshrrev_b32 v18, 1, v16")
            e(f"v_add_u32 v19, s{S_T0}, v18\nv_and_b32 v19, 3, v19\nv_cmp_gt_u32 vcc, 4, v18")
            e("v_and_b32 v16, 1, v16\nv_mul_u32_u24 v17, 1280, v17\nv_cndmask_b32 v18, v18, v19, vcc")
            e("v_lshl_add_u32 v17, v16, 4, v17\nv_lshl_add_u32 v17, v18, 5, v17")
            e(f"v_subrev_u32 v{DA + n}, {1024 * n if n < 4 else 0}, v17")
        e(f"v_lshlrev_b32 v16, 4, v0\nv_add_u32 v16, {SYNC}, v16\nv_mov_b64 v[40:41], 0\nv_mov_b64 v[42:43], 0")
        e("ds_write_b128 v16, v[40:43]")
        e(f"v_lshlrev_b32 v{V_LA}, 2, v0\nv_add_u32 v{V_LA}, {SYNC}, v{V_LA}")
        e(f"v_min_u32 v{V_PA}, 2, v0\nv_lshlrev_b32 v{V_PA}, 8, v{V_PA}\nv_add_u32 v{V_PA}, {SYNC + 256}, v{V_PA}")
        e("s_waitcnt lgkmcnt(0)")
        kv = [lambda: K(0), lambda: K(1), lambda: V(0), lambda: K(2), lambda: V(1), lambda: K(3), lambda: V(2)]
        kvq = o["kvq"]
        plan = {s: [] for s in range(10)}
        for n, f in enumerate(kv):
            plan[kvq + n * (10 - kvq) // 7].append(f)
        qstep(1)
        for s in range(10):
            qbar(s)
            if s + 2 < 10:
                qstep(s + 2)
            if s == o.get("warmq", -1):
                e(f"s_lshl_b32 s{S_T1}, s{S_KG}, 5\ns_add_u32 s{S_T1}, s{S_T1}, s{S_J}\ns_mul_i32 s{S_T1}, s{S_T1}, 40960")
                e("v_lshlrev_b32 v18, 7, v0")
                for n in range(5):
                    e(f"buffer_load_dword v19, v18, {srd_(SRD_WO)}, s{S_T1} offen\ns_add_u32 s{S_T1}, s{S_T1}, 8192")
                    self.vq.append("warm")
            if s == kvq:
                self.stamp("kv_start", "l")
            for f in plan[s]:
                f()
        self.vwait("k0")
        e("s_barrier")
        self.stamp("b_pre", "l")

        def publish():
            e(f"v_mov_b32 v{V_L}, s{S_PUB}\nds_write_b32 v{V_LA}, v{V_L}")

        nneed = [0]

        def need():
            k = nneed[0]
            nneed[0] += 1
            e(f"s_cmp_ge_u32 s{S_MINP}, s{S_REQ}\ns_cbranch_scc1 L_have{k}")
            e(f"s_call_b64 s[{S_RET}:{S_RET + 1}], L_need\nL_have{k}:")

        e(f"s_mov_b32 s{S_N}, 3\ns_mov_b32 s{S_MINP}, 0\ns_mov_b32 s{S_PUB}, 0")
        e("L_kv:")
        e(f"s_max_u32 s{S_REQ}, s{S_N}, 6\ns_sub_u32 s{S_REQ}, s{S_REQ}, 6\ns_mov_b32 s{S_FULL}, s{S_N}")
        need()
        e(f"s_add_u32 s{S_T1}, s{S_N}, 1\ns_lshl_b32 s{S_XO}, s{S_T1}, 13\ns_and_b32 s{S_T1}, s{S_T1}, 7\ns_lshl_b32 s{S_T1}, s{S_T1}, 14")
        tile(SRD_K, KA, 4, f"s{S_XO}", f"s{S_T1}", "")
        e(f"s_sub_u32 s{S_XO}, s{S_XO}, 8192\ns_and_b32 s{S_T1}, s{S_N}, 7\ns_lshl_b32 s{S_T1}, s{S_T1}, 14\ns_add_u32 s{S_T1}, s{S_T1}, 8192")
        tile(SRD_V, VA, 2, f"s{S_XO}", f"s{S_T1}", "")
        e(f"s_sub_u32 s{S_T1}, s{S_N}, 1\ns_max_u32 s{S_PUB}, s{S_PUB}, s{S_T1}")
        e("s_waitcnt vmcnt(32)")
        publish()
        if o.get("tsteps"):
            e(f"s_memrealtime s[{S_RET}:{S_RET + 1}]\ns_waitcnt lgkmcnt(0)\ns_mov_b32 m0, s{S_N}\nv_writelane_b32 v44, s{S_RET}, m0")
            e(f"s_add_u32 m0, s{S_N}, 32\nv_writelane_b32 v44, s{S_MINP}, m0")
        if o.get("warm"):
            w0 = o["warm"]
            e(f"s_sub_u32 s{S_T0}, s{S_N}, {w0}\ns_cmp_ge_u32 s{S_T0}, 5\ns_cbranch_scc1 L_kv_w")
            e(f"s_lshl_b32 s{S_T1}, s{S_KG}, 5\ns_add_u32 s{S_T1}, s{S_T1}, s{S_J}\ns_mul_i32 s{S_T1}, s{S_T1}, 40960")
            e(f"s_lshl_b32 s{S_T0}, s{S_T0}, 13\ns_add_u32 s{S_T0}, s{S_T0}, s{S_T1}\nv_lshlrev_b32 v18, 7, v0")
            e(f"buffer_load_dword v19, v18, {srd_(SRD_WO)}, s{S_T0} offen")
            e("L_kv_w:")
        if o["pf_code"]:
            e(f"s_cmp_lg_u32 s{S_N}, 27\ns_cbranch_scc1 L_kv_n")
            self.code_srd()
            e(f"s_and_b32 s{S_T0}, s{S_J}, 3\ns_lshl_b32 s{S_T0}, s{S_T0}, 13\nv_lshlrev_b32 v18, 7, v0")
            e(f"buffer_load_dword v19, v18, {srd_(SRD_CODE)}, s{S_T0} offen")
            e("L_kv_n:")
        e(f"s_add_u32 s{S_N}, s{S_N}, 1\ns_cmp_lt_u32 s{S_N}, 31\ns_cbranch_scc1 L_kv")
        e(f"s_mov_b32 s{S_REQ}, 25\ns_mov_b32 s{S_FULL}, 31")
        need()
        self.vq = ["s29"] * 16 + ["s30"] * 16
        V(31)
        self.stamp("kv_end", "l")
        self.vwait("s29")
        e(f"s_max_u32 s{S_PUB}, s{S_PUB}, 30")
        publish()

        def wsrc_static(n):
            if n % 4 == 0:
                e(f"s_add_u32 s{S_T1}, s{S_I}, {n >> 2}\ns_and_b32 s{S_T1}, s{S_T1}, 7")
                e(f"s_mul_i32 s{S_WO_}, s{S_T1}, {128 * 1280}\ns_add_u32 s{S_WO_}, s{S_WO_}, s{S_XO}")

        def wstep(lds):
            e(f"s_mov_b32 m0, {lds}\ns_nop 0")
            for n in range(4):
                e(f"buffer_load_dwordx4 v{DA + n}, {srd_(SRD_WO)}, s{S_WO_} offen offset:{n * 1024} {o['wpol']} lds")
            e("s_add_u32 m0, m0, 4096\ns_nop 0")
            e(f"buffer_load_dwordx4 v{DA + 4}, {srd_(SRD_WO)}, s{S_WO_} offen {o['wpol']} lds")
            e(f"s_add_u32 s{S_WO_}, s{S_WO_}, {32 * 1280}")
            self.vq += ["w"] * 5

        e(f"s_mul_i32 s{S_XO}, s{S_KG}, {1024 * 1280}\ns_mul_i32 s{S_T0}, s{S_I}, 160\ns_add_u32 s{S_XO}, s{S_XO}, s{S_T0}")
        for n in range(5):
            wsrc_static(n)
            wstep(phys(n) * KSTEP)
            if n == 2:
                self.vwait("s30")
                e(f"s_max_u32 s{S_PUB}, s{S_PUB}, 31")
                publish()
        self.vwait("v31")
        e(f"s_mov_b32 s{S_PUB}, 32")
        publish()
        self.stamp("kv_landed", "l")
        e(f"s_mov_b32 s{S_N}, 5\ns_mov_b32 s{S_SLOT}, 0\ns_mov_b32 s{S_FULL}, 33")
        e("L_wo:")
        e(f"s_add_u32 s{S_REQ}, s{S_SLOT}, {KSTEP - 1}\ns_lshr_b32 s{S_REQ}, s{S_REQ}, 14\ns_min_u32 s{S_REQ}, s{S_REQ}, 7\ns_add_u32 s{S_REQ}, s{S_REQ}, 26")
        need()
        e(f"s_and_b32 s{S_T0}, s{S_N}, 3\ns_cmp_lg_u32 s{S_T0}, 0\ns_cbranch_scc1 L_wo_same")
        e(f"s_lshr_b32 s{S_T1}, s{S_N}, 2\ns_add_u32 s{S_T1}, s{S_T1}, s{S_I}\ns_and_b32 s{S_T1}, s{S_T1}, 7")
        e(f"s_mul_i32 s{S_WO_}, s{S_T1}, {128 * 1280}\ns_add_u32 s{S_WO_}, s{S_WO_}, s{S_XO}")
        e("L_wo_same:")
        wstep(f"s{S_SLOT}")
        e(f"s_cmp_lg_u32 s{S_N}, 9\ns_cbranch_scc1 L_wo_n")
        e(f"s_waitcnt vmcnt(25)\ns_mov_b32 s{S_PUB}, 33")
        publish()
        e("L_wo_n:")
        e(f"s_add_u32 s{S_SLOT}, s{S_SLOT}, {KSTEP}\ns_add_u32 s{S_N}, s{S_N}, 1\ns_cmp_lt_u32 s{S_N}, 31\ns_cbranch_scc1 L_wo")
        e(f"s_mov_b32 s{S_REQ}, 34")
        need()
        e("s_waitcnt lgkmcnt(0)")
        wstep(31 * KSTEP)
        self.stamp("wo_issued", "l")
        e("s_waitcnt vmcnt(0)")
        self.stamp("wo_landed", "l")
        e("s_barrier")
        if o.get("tsteps"):
            e(f"s_lshl_b32 s{S_T0}, s2, 8\ns_add_u32 s{S_T0}, s{S_T0}, {LANE_OFF}\nv_lshlrev_b32 v41, 2, v0")
            e("v_cmp_gt_u32 vcc, 32, v0\nv_subrev_u32 v45, s78, v44\ns_nop 0\nv_cndmask_b32 v44, v44, v45, vcc")
            e(f"buffer_store_dword v44, v41, {srd_(SRD_WS)}, s{S_T0} offen")
        self.stamp_store("l")
        e("s_endpgm")

        def rdprog():
            e(f"ds_read_b32 v{V_P}, v{V_PA}\ns_waitcnt lgkmcnt(0)")
            e(f"v_readlane_b32 s{S_MINP}, v{V_P}, 0\nv_readlane_b32 s{S_T0}, v{V_P}, 1\nv_readlane_b32 s{S_T1}, v{V_P}, 2\ns_nop 0")
            e(f"s_min_u32 s{S_MINP}, s{S_MINP}, s{S_T0}\ns_min_u32 s{S_MINP}, s{S_MINP}, s{S_T1}")
            e(f"s_cmp_ge_u32 s{S_MINP}, s{S_REQ}\ns_cbranch_scc1 L_need_ret")

        e("L_need:")
        rdprog()
        e(f"s_max_u32 s{S_PUB}, s{S_PUB}, s{S_FULL}\ns_mov_b32 s{S_SPIN}, 0\ns_waitcnt vmcnt(0)")
        publish()
        e("L_need_spin:")
        rdprog()
        e(f"s_sleep 1\ns_add_u32 s{S_SPIN}, s{S_SPIN}, 1\ns_cmp_lt_u32 s{S_SPIN}, {SPIN_MAX}\ns_cbranch_scc1 L_need_spin")
        e("L_need_ret:")
        e(f"s_setpc_b64 s[{S_RET}:{S_RET + 1}]")

    def compute_setup(self):
        e = self.e
        e("L_compute:")
        if self.o["pf_code"]:
            self.code_srd()
            e(f"s_and_b32 s{S_T0}, s{S_J}, 3\ns_lshl_b32 s{S_T0}, s{S_T0}, 13\nv_lshlrev_b32 v1, 7, v0")
            e(f"s_cmp_lg_u32 s{S_WAVE}, 0\ns_cbranch_scc1 L_nopf")
            e(f"buffer_load_dword v251, v1, {srd_(SRD_CODE)}, s{S_T0} offen")
            e("L_nopf:")
        e("s_waitcnt lgkmcnt(0)")
        self.srd(SRD_OUT, 14, None, 1474560)
        self.srd(SRD_DBG, 16, None, 256)
        self.srd(SRD_WS, 18, None, 0x10000000)
        e(f"s_lshl_b32 s{S_BH}, s{S_B}, 5\ns_add_u32 s{S_BH}, s{S_BH}, s{S_H}")
        e(f"s_lshl2_add_u32 s{S_T0}, s2, s{S_WAVE}\ns_cmp_lg_u32 s{S_T0}, 1\ns_cbranch_scc1 L_notag")
        e(f"s_memrealtime s[{S_RET}:{S_RET + 1}]\nv_mov_b32 v16, 0\ns_waitcnt lgkmcnt(0)")
        e(f"s_or_b32 s{S_RET + 1}, s{S_RET + 1}, 0x40000000")
        e(f"v_mov_b32 v18, s{S_RET}\nv_mov_b32 v19, s{S_RET + 1}\ns_mov_b64 exec, 1")
        e(f"buffer_store_dwordx2 v[18:19], v16, {srd_(SRD_DBG)}, 0 offen sc1")
        e("s_mov_b64 exec, -1\ns_nop 1")
        e("L_notag:")
        e("v_lshrrev_b32 v1, 4, v0\nv_and_b32 v2, 15, v0\nv_lshrrev_b32 v3, 2, v2\nv_and_b32 v16, 3, v0")
        e("v_and_b32 v17, 1, v1\nv_lshlrev_b32 v18, 1, v17\nv_lshl_or_b32 v17, v17, 2, v3\nv_lshrrev_b32 v19, 1, v1\nv_or_b32 v18, v18, v19")
        e("v_lshl_add_u32 v19, v1, 3, v3\nv_lshlrev_b32 v19, 8, v19\nv_lshl_add_u32 v19, v16, 3, v19")
        e(f"v_add_u32 v19, {QS0}, v19")
        for t in range(8):
            e(f"v_xor_b32 v20, {t}, v17\nv_lshl_add_u32 v{AW(t)}, v20, 5, v19")
        e(f"s_mul_i32 s{S_T0}, s{S_WAVE}, {48 * 128}\ns_add_u32 s{S_T0}, s{S_T0}, {QS0 + 16384}")
        e(f"v_lshlrev_b32 v19, 7, v2\nv_add_u32 v19, s{S_T0}, v19\nv_lshrrev_b32 v21, 1, v2")
        for s in range(2):
            e(f"v_or_b32 v20, {4 * s}, v1\nv_xor_b32 v20, v20, v21\nv_lshl_add_u32 v{AX(s)}, v20, 4, v19")
        e("v_lshlrev_b32 v19, 8, v2")
        for s in range(4):
            e(f"v_or_b32 v20, {4 * s}, v18\nv_xor_b32 v20, v20, v2\nv_lshl_add_u32 v{AK(s)}, v20, 4, v19")
        e(f"v_lshl_add_u32 v19, v1, 2, v3\nv_lshlrev_b32 v19, 8, v19\nv_lshl_add_u32 v19, v16, 3, v19\nv_add_u32 v19, {8192 + 65536}, v19")
        for t in range(8):
            e(f"v_xor_b32 v20, {t}, v17\nv_lshl_add_u32 v{AV(t)}, v20, 5, v19")
        e(f"v_mov_b32 v{V_LA}, {SYNC}\nv_mov_b32 v{V_P}, 0")
        e(f"s_lshl_b32 s{S_T0}, s{S_WAVE}, 8\ns_add_u32 s{S_T0}, s{S_T0}, {SYNC + 256}\nv_lshlrev_b32 v19, 2, v0\nv_add_u32 v{V_PA}, s{S_T0}, v19")
        e(f"v_lshrrev_b32 v19, 2, v0\nv_mul_u32_u24 v19, 160, v19\nv_lshl_add_u32 v{RW}, v16, 3, v19")
        e(f"v_add_u32 v{RW + 1}, {12 * KSTEP}, v{RW}\nv_add_u32 v{RW + 2}, {24 * KSTEP}, v{RW}")
        for r in range(16, 124, 2):
            e(f"v_mov_b64 v[{r}:{r + 1}], 0")
        e(f"v_mov_b64 v[{P_(2)}:{P_(2) + 1}], 0\nv_mov_b64 v[{P_(2) + 2}:{P_(2) + 3}], 0")
        for r in range(4):
            e(f"v_mov_b32 v{ONES + r}, 0x3f803f80")
        e(f"s_mov_b32 s{S_NEED}, 1\ns_mov_b32 s{S_MASK}, 0x40004000")

    def qphase(self):
        e = self.e

        def rdw(t, s, hh):
            return ("ds", f"ds_read_b64_tr_b16 {a_(WF(t) + 2 * hh, 2)}, v{AW(t)} offset:{s * 8192 + hh * 1024}")

        def rdx(p, j):
            return ("ds", f"ds_read_b128 {a_(XF(p, j), 4)}, v{AX(p)} offset:{j * 2048}")

        def wf(*ts):
            r = set()
            for t in ts:
                r |= regs_of(a_(WF(t), 4))
            return r

        M, fill = [], {}
        for s in range(2):
            for t in range(8):
                for j in range(3):
                    M.append((v(O_(j, t), 4), a_(WF(t), 4), a_(XF(s, j), 4), v(O_(j, t), 4)))
        add = lambda r: f"v_add_u32 v{r}, s{S_T0}, v{r}"
        F = lambda k: fill.setdefault(k, [])
        for t in range(8):
            if t in (1, 3, 5):
                F(3 * t + 2).append(("wait", wf(t + 1, t + 2)))
            F(3 * t + 2).append(rdw(t, 1, 0))
            F(3 * t + 3).append(rdw(t, 1, 1))
        F(2).insert(0, ("wait", wf(1)))
        for j in range(3):
            F(3 * j + 4).append(rdx(1, j))
        F(23).insert(0, ("wait", wf(0, 1) | regs_of(a_(XF(1, 0), 12))))
        b = 24
        F(b + 1).append(f"s_add_u32 s{S_SLOT}, s{S_SLOT}, 1")
        F(b + 2).append(f"s_cmp_eq_u32 s{S_SLOT}, 3")
        F(b + 3).append(f"s_cselect_b32 s{S_T0}, {(-2 * QSLOT) & 0xffffffff}, s{S_T1}")
        F(b + 4).append(f"s_cselect_b32 s{S_SLOT}, 0, s{S_SLOT}")
        F(b + 4).extend([add(AW(0)), add(AW(1))])
        F(b + 5).extend([("wait0",), "s_barrier"])
        F(b + 6).extend([rdw(0, 0, 0), add(AX(0))])
        F(b + 7).extend([rdw(0, 0, 1), add(AW(2))])
        F(b + 8).extend([rdx(0, 0), rdw(1, 0, 0)])
        F(b + 9).extend([rdx(0, 1), rdw(1, 0, 1)])
        F(b + 10).extend([rdx(0, 2), add(AX(1))])
        F(b + 11).extend([rdw(2, 0, 0), add(AW(3))])
        F(b + 12).extend([rdw(2, 0, 1), add(AW(4))])
        F(b + 13).extend([rdw(3, 0, 0), add(AW(5))])
        F(b + 14).extend([rdw(3, 0, 1), add(AW(6))])
        F(b + 15).extend([rdw(4, 0, 0), add(AW(7))])
        F(b + 16).append(rdw(4, 0, 1))
        F(b + 17).append(rdw(5, 0, 0))
        F(b + 18).append(rdw(5, 0, 1))
        F(b + 19).append(f"s_sub_u32 s{S_CNT}, s{S_CNT}, 1")
        F(b + 20).extend([f"s_cmp_lg_u32 s{S_CNT}, 0", rdw(6, 0, 0)])
        F(b + 21).append(rdw(6, 0, 1))
        F(b + 22).append(("wait", wf(0) | regs_of(a_(XF(0, 0), 12))))
        F(b + 23).extend([rdw(7, 0, 0), rdw(7, 0, 1)])

        e(f"s_mov_b32 s{S_SLOT}, 0\ns_mov_b32 s{S_T1}, {QSLOT}\ns_mov_b32 s{S_CNT}, 10")
        e("s_barrier")
        first = [rdw(0, 0, 0), rdw(0, 0, 1), rdx(0, 0), rdw(1, 0, 0), rdx(0, 1), rdw(1, 0, 1), rdx(0, 2)]
        for t in range(2, 8):
            first += [rdw(t, 0, 0), rdw(t, 0, 1)]
        for x in first:
            self.ds(x[1])
        self.lwait(wf(0) | regs_of(a_(XF(0, 0), 12)))
        entry = [set(x) for x in self.lq]
        e(".p2align 3")
        e("L_q:")
        self.strict = True
        if self.o.get("q_nomfma"):
            for k in range(len(M)):
                M[k] = (v(S_(0, 0), 4), M[k][1], M[k][2], v(S_(0, 0), 4))
        self.stream(M, fill)
        self.strict = False
        assert [set(x) for x in self.lq] == entry, "loop-carried LDS queue differs"
        e("s_cbranch_scc1 L_q")
        self.lwait0()
        for s in range(4):
            for u in range(2):
                self.ds(f"ds_read_b128 {a_(KF(u, s), 4)}, v{AK(s)} offset:{u * 4096}")
        c = math.log2(math.e) / math.sqrt(128.0)
        e(f"s_mov_b32 s{S_RET}, {f2u(c):#x}\ns_mov_b32 s{S_RET + 1}, {f2u(c):#x}\ns_mov_b32 s{S_CNT}, 8")

        def prep(j):
            ops = []
            for r in range(O_(j, 0), O_(j, 0) + 32, 2):
                ops.append(f"v_pk_mul_f32 v[{r}:{r + 1}], v[{r}:{r + 1}], s[{S_RET}:{S_RET + 1}]")
            for s in range(4):
                ops += self.pack_ops(j, s)
            for r in range(O_(j, 0), O_(j, 0) + 32, 2):
                ops.append(f"v_mov_b64 v[{r}:{r + 1}], 0")
            for s in range(4):
                q = Q_(j, s)
                ops += [f"v_permlane16_swap_b32 v{q}, v{q + 2}", f"v_permlane16_swap_b32 v{q + 1}, v{q + 3}"]
            return ops

        def ref(j):
            ops = self.rowmax(j)
            ops += [f"v_sub_f32 v{NM(j) + r}, 0, v1" for r in range(4)]
            return ops

        def with_qk(j, ops):
            M = [(d, a, b, "0" if c == v(NM(j), 4) else c) for d, a, b, c in self.qk(j)]
            fill = {k: ops[2 * k:2 * k + 2] for k in range(7)}
            fill[7] = ops[14:]
            self.stream(M, fill)

        for x in prep(0) + ["s_nop 0"]:
            e(x)
        with_qk(0, prep(1) + ["s_nop 0"])
        with_qk(1, prep(2) + ["s_nop 0"])
        zero_v = [f"v_accvgpr_write_b32 a{VF(0) + r}, 0" for r in range(32)]
        with_qk(2, zero_v[:16] + ref(0) + [f"v_sub_f32 v{S_(0, 0) + k}, v{S_(0, 0) + k}, v1" for k in range(8)])
        for x in ref(1) + zero_v[16:] + ref(2):
            e(x)

    def rowmax(self, j):
        s0 = S_(j, 0)
        return [f"v_max3_f32 v1, v{s0}, v{s0 + 1}, v{s0 + 2}", f"v_max3_f32 v1, v1, v{s0 + 3}, v{s0 + 4}",
                f"v_max3_f32 v1, v1, v{s0 + 5}, v{s0 + 6}", f"v_max_f32 v1, v1, v{s0 + 7}",
                "v_mov_b32 v2, v1", "s_nop 1", "v_permlane16_swap_b32 v1, v2", "v_max_f32 v1, v1, v2",
                "v_mov_b32 v2, v1", "s_nop 1", "v_permlane32_swap_b32 v1, v2", "v_max_f32 v1, v1, v2",
                "v_add_f32 v1, 0x40e00000, v1"]

    def pack_ops(self, j, s):
        q = Q_(j, s)
        return [f"v_cvt_pk_bf16_f32 v{q + n}, v{O_(j, 2 * s) + 2 * n}, v{O_(j, 2 * s) + 2 * n + 1}" for n in range(4)]

    def qk(self, j):
        out = []
        for s in range(4):
            for u in range(2):
                c = v(NM(j), 4) if s == 0 else v(S_(j, u), 4)
                out.append((v(S_(j, u), 4), a_(KF(u, s), 4), v(Q_(j, s), 4), c))
        return out

    def pv(self, j):
        out = [(v(O_(j, t), 4), a_(VF(t), 4), v(P_(j), 4), v(O_(j, t), 4)) for t in range(8)]
        out.append((v(L_(j), 4), v(ONES, 4), v(P_(j), 4), v(L_(j), 4)))
        return out

    def site(self, target):
        k = len(self.sites)
        self.sites.append(target)
        return f"s_cbranch_vccnz L_stub{k}\nL_ret{k}:"

    def sm_ops(self, j):
        X = [f"v_exp_f32 v{E_ + k}, v{S_(j, 0) + k}" for k in range(8)]
        C = [f"v_cvt_pk_bf16_f32 v{P_(j) + k}, v{E_ + 2 * k}, v{E_ + 2 * k + 1}" for k in range(4)]
        p = P_(j)
        K = [f"v_or3_b32 v{V_ACC}, v{p}, v{p + 1}, v{p + 2}",
             f"v_bitop3_b32 v{V_ACC}, v{V_ACC}, v{p + 3}, s{S_MASK} bitop3:0xa8",
             f"v_cmp_ne_u32 vcc, 0, v{V_ACC}",
             self.site(f"L_rare{j}")]
        return X, C, K

    def tile(self, a):
        M = self.qk(1) + self.pv(2) + self.qk(2) + self.pv(0) + self.qk(0) + self.pv(1)
        X0, C0, K0 = self.sm_ops(0)
        X1, C1, K1 = self.sm_ops(1)
        X2, C2, K2 = self.sm_ops(2)

        def rv(t, hh):
            return ("ds", f"ds_read_b64_tr_b16 {a_(VF(t) + 2 * hh, 2)}, v{AV(t)} offset:{a * 16384 + hh * 4096}")

        def rk(k):
            u, s = k & 1, k >> 1
            return ("ds", f"ds_read_b128 {a_(KF(u, s), 4)}, v{AK(s)} offset:{((a + 1) & 3) * 16384 + u * 4096}")

        kf = lambda *ks: set().union(*[regs_of(a_(KF(k & 1, k >> 1), 4)) for k in ks])
        flip = lambda r: f"v_xor_b32 v{r}, 0x10000, v{r}"
        fill = {
            0: [X0[7]], 1: [C0[0], C0[1]], 2: [C0[2], C0[3]], 3: [K0[0], K0[1]],
            4: [K0[2], f"v_add_u32 v{V_P}, 1, v{V_P}"],
            5: [("wait0",), ("ds", f"ds_write_b32 v{V_PA}, v{V_P}")],
            6: [K0[3], f"v_cmp_gt_u32 vcc, s{S_NEED}, v{V_L}"], 7: [],
            8: [self.site("L_spin"), rv(0, 0)],
            9: [f"s_add_u32 s{S_NEED}, s{S_NEED}, 1", rv(0, 1), rv(1, 0)], 10: [rv(1, 1), rv(2, 0)], 11: [X1[0]],
            12: [rv(2, 1), rv(3, 0)], 13: [X1[1]], 14: [rv(3, 1), rv(4, 0)], 15: [X1[2]],
            16: [rv(4, 1), rv(5, 0)], 17: [X1[3]], 18: [rv(5, 1), C1[0]], 19: [rv(6, 0), C1[1]],
            20: [X1[4]], 21: [rv(6, 1), rv(7, 0)], 22: [X1[5]], 23: [rv(7, 1), rk(0)],
            24: [("wait", regs_of(a_(VF(0), 24))), X1[6]], 25: [rk(1), rk(2)], 26: [X1[7]],
            27: [rk(3), C1[2]], 28: [rk(4), C1[3]], 29: [rk(5), K1[0]],
            30: [("wait", regs_of(a_(VF(6), 8))), rk(6), K1[1]], 31: [rk(7), K1[2]], 32: [X2[0]],
            33: [K1[3], ("wait", kf(0, 1, 2, 3)), X2[1]],
            34: [X2[2]], 35: [X2[3]], 36: [X2[4]], 37: [("wait", kf(4, 5, 6, 7)), X2[5]], 38: [X2[6]], 39: [X2[7]],
            40: [C2[0], C2[1]], 41: [C2[2], C2[3]], 42: [K2[0], K2[1]],
            43: [("ds", f"ds_read_b32 v{V_L}, v{V_LA}"), K2[2]],
            44: [X0[0]], 45: [K2[3], X0[1]], 46: [X0[2]], 47: [X0[3]], 48: [X0[4]], 49: [X0[5]], 50: [X0[6]],
        }
        if a == 0:
            fill[5].append(flip(AV(0)))
            fill[6].append(flip(AV(1)))
            fill[7] += [flip(AV(2)), flip(AV(3))]
            fill[8].append(flip(AV(4)))
            fill[11].append(flip(AV(5)))
            fill[13].append(flip(AV(6)))
            fill[15].append(flip(AV(7)))
        if a == 3:
            fill[5].append(flip(AK(0)))
            fill[6].append(flip(AK(1)))
            fill[7] += [flip(AK(2)), flip(AK(3))]
            fill[31].insert(0, f"s_sub_u32 s{S_CNT}, s{S_CNT}, 1")
            fill[33] = fill[33][:1] + [f"s_cmp_eq_u32 s{S_CNT}, 0", "s_cbranch_scc1 L_att_tail"] + fill[33][1:]
        self.stream(M, fill)

    def attention(self):
        e, o = self.e, self.o
        assert not self.lq
        self.ds(f"ds_read_b32 v{V_L}, v{V_LA}")
        for k in range(7):
            e(f"v_exp_f32 v{E_ + k}, v{S_(0, 0) + k}")
        self.stamp("att0", "c")
        entry = [set(x) for x in self.lq]
        e(".p2align 3")
        e("L_att:")
        self.strict = True
        for a in range(4):
            self.tile(a)
        self.strict = False
        assert [set(x) for x in self.lq] == entry
        e("s_branch L_att")
        e("L_att_tail:")
        self.stamp("att1", "c")
        e(f"v_mov_b32 v{V_TAG + 2}, 0\nv_mov_b32 v{V_P}, 33")
        e(f"buffer_load_dwordx2 {v(V_TAG, 2)}, v{V_TAG + 2}, {srd_(SRD_DBG)}, 0 offen sc1")
        self.lwait0()
        self.ds(f"ds_write_b32 v{V_PA}, v{V_P}")
        X2, C2, K2 = self.sm_ops(2)
        fill = {k: [X2[k + 1]] for k in range(7)}
        fill[7] = [C2[0], C2[1]]
        fill[8] = [C2[2], C2[3], K2[0], K2[1], K2[2]]
        self.stream(self.pv(1), fill)
        e(f"s_mul_i32 s{S_OB}, s{S_B}, 9\ns_mul_i32 s{S_T1}, s{S_WAVE}, 3\ns_add_u32 s{S_OB}, s{S_OB}, s{S_T1}")
        e(f"s_lshl_b32 s{S_OB}, s{S_OB}, 5\ns_add_u32 s{S_T0}, s{S_OB}, s{S_H}\ns_lshl_b32 s{S_T0}, s{S_T0}, 12")
        e(K2[3])
        e("v_lshlrev_b32 v1, 4, v0")

        def norm(j):
            ops = [f"v_rcp_f32 v2, v{L_(j)}", f"v_rcp_f32 v3, v{L_(j)}", "s_nop 0"]
            for s in range(4):
                for r in range(O_(j, 2 * s), O_(j, 2 * s) + 8, 2):
                    ops.append(f"v_pk_mul_f32 v[{r}:{r + 1}], v[{r}:{r + 1}], v[2:3]")
                ops += self.pack_ops(j, s)
                ops.append(f"buffer_store_dwordx4 {v(Q_(j, s), 4)}, v1, {srd_(SRD_WS)}, s{S_T0} offen offset:{s * 1024} sc1")
            ops.append(f"s_add_u32 s{S_T0}, s{S_T0}, {32 * 4096}")
            return ops

        n0 = norm(0)
        fill = {k: n0[2 * k:2 * k + 2] for k in range(8)}
        fill[8] = n0[16:]
        self.stream(self.pv(2), fill)
        for j in (1, 2):
            for x in norm(j):
                e(x)
        self.stamp("stored", "c")

    def rare(self):
        e = self.e
        for k, target in enumerate(self.sites):
            e(f"L_stub{k}:\ns_call_b64 s[{S_RET}:{S_RET + 1}], {target}\ns_branch L_ret{k}")
        e("L_spin:")
        e(f"s_mov_b32 s{S_SPIN}, 0")
        e("L_spin1:")
        e(f"ds_read_b32 v{V_L}, v{V_LA}\ns_add_u32 s{S_SPIN}, s{S_SPIN}, 1\ns_waitcnt lgkmcnt(0)")
        e(f"v_cmp_gt_u32 vcc, s{S_NEED}, v{V_L}\ns_cmp_ge_u32 s{S_SPIN}, {SPIN_MAX}\ns_cbranch_scc1 L_spin2")
        e("s_cbranch_vccnz L_spin1")
        e("L_spin2:")
        e(f"s_setpc_b64 s[{S_RET}:{S_RET + 1}]")
        for j in range(3):
            s0 = S_(j, 0)
            e(f"L_rare{j}:")
            e("s_nop 7")
            for x in self.rowmax(j):
                e(x)
            e("v_max_f32 v1, 0, v1")
            e("v_exp_f32 v2, -v1\nv_exp_f32 v3, -v1\ns_nop 0")
            for r in list(range(O_(j, 0), O_(j, 0) + 32, 2)) + [L_(j), L_(j) + 2]:
                e(f"v_pk_mul_f32 v[{r}:{r + 1}], v[{r}:{r + 1}], v[2:3]")
            for r in range(4):
                e(f"v_sub_f32 v{NM(j) + r}, v{NM(j) + r}, v1")
            for k in range(8):
                e(f"v_sub_f32 v{s0 + k}, v{s0 + k}, v1")
            for k in range(8):
                e(f"v_exp_f32 v{s0 + k}, v{s0 + k}")
            e("s_nop 0")
            for k in range(4):
                e(f"v_cvt_pk_bf16_f32 v{P_(j) + k}, v{s0 + 2 * k}, v{s0 + 2 * k + 1}")
            e("s_nop 1")
            e(f"s_setpc_b64 s[{S_RET}:{S_RET + 1}]")

    def poll(self, name, areg, soff):
        e = self.e
        e(f"s_mov_b32 s{S_SPIN}, 0")
        e(f"L_{name}:")
        e(f"buffer_load_dwordx2 v[2:3], v{areg}, {srd_(SRD_WS)}, s{soff} offen sc1")
        e(f"s_add_u32 s{S_SPIN}, s{S_SPIN}, 1\ns_waitcnt vmcnt(0)\nv_cmp_ne_u64 vcc, s[{S_TAG}:{S_TAG + 1}], v[2:3]")
        e(f"s_cmp_ge_u32 s{S_SPIN}, 0x40000\ns_cbranch_scc1 L_{name}_end")
        e(f"s_cbranch_vccz L_{name}_end\ns_sleep {self.o.get('psleep', 1)}\ns_branch L_{name}")
        e(f"L_{name}_end:")

    def signal(self, soff, areg=V_TAG + 2, mask=1):
        e = self.e
        e(f"s_mov_b64 exec, {mask}")
        e(f"buffer_store_dwordx2 {v(V_TAG, 2)}, v{areg}, {srd_(SRD_WS)}, s{soff} offen sc1")
        e("s_mov_b64 exec, -1")

    def projection(self):
        e, o = self.e, self.o
        ACC = lambda c, j: 16 + 12 * c + 4 * j
        WO = lambda c: 4 * c
        DEPTH = 8
        OF = lambda n, j: 32 + 12 * (n % DEPTH) + 4 * j
        OA = 11

        def rw(n, c, hh):
            p = phys(n)
            return ("ds", f"ds_read_b64_tr_b16 {a_(WO(c) + 2 * hh, 2)}, v{RW + p // 12} offset:{(p % 12) * KSTEP + hh * 2560 + c * 32}")

        def ldo(n, j):
            r = []
            if n % 4 == 0 and j == 0:
                r += [f"s_add_u32 s{S_T1}, s{S_I}, {n >> 2}", f"s_and_b32 s{S_T1}, s{S_T1}, 7",
                      f"s_lshl_b32 s{S_T1}, s{S_T1}, 12", f"s_add_u32 s{S_XO}, s{S_OB}, s{S_T1}"]
            r.append(f"buffer_load_dwordx4 {a_(OF(n, j), 4)}, v{OA + j}, {srd_(SRD_WS)}, s{S_XO} offen offset:{(n & 3) * 1024} sc1")
            return r

        def kstep(n, last):
            M, fill = [], {}
            for c in range(5):
                for j in range(3):
                    b = v(Q_(j, n), 4) if n < 4 else a_(OF(n, j), 4)
                    M.append((v(ACC(c, j), 4), a_(WO(c), 4), b, "0" if n == 0 else v(ACC(c, j), 4)))
                if not last:
                    fill[3 * c + 2] = [rw(n + 1, c, 0)]
                    if c < 4:
                        fill[3 * c + 3] = [rw(n + 1, c, 1)]
                    else:
                        fill[14].append(rw(n + 1, c, 1))
            return M, fill

        def waits(fill):
            for c, cs in ((0, (1, 2)), (2, (3, 4))):
                regs = set().union(*[regs_of(a_(WO(x), 4)) for x in cs])
                fill.setdefault(3 * c + 1, []).insert(0, ("wait", regs))
            fill.setdefault(13, []).insert(0, ("wait", regs_of(a_(WO(0), 4))))

        self.lq = []
        e(f"s_mov_b32 s{S_NEED}, 33\ns_call_b64 s[{S_RET}:{S_RET + 1}], L_spin")
        e(f"v_mov_b32 v{V_P}, 34")
        self.ds(f"ds_write_b32 v{V_PA}, v{V_P}")
        for c in range(5):
            for hh in range(2):
                self.ds(rw(0, c, hh)[1])
        e(f"s_lshl3_add_u32 s{S_OB}, s{S_KG}, s{S_OB}\ns_lshl_b32 s{S_OB}, s{S_OB}, 12")
        e(f"v_add_u32 v{OA + 1}, {32 * 4096}, v1\nv_add_u32 v{OA + 2}, {64 * 4096}, v1\nv_mov_b32 v{OA}, v1")
        self.lwait(regs_of(a_(WO(0), 4)))
        for n in range(4):
            M, fill = kstep(n, n == 3)
            waits(fill)
            self.stream(M, fill)
        self.stamp("own_done", "c")
        e(f"s_waitcnt vmcnt(0)\ns_mov_b32 s{S_SPIN}, 0")
        e("L_tag:")
        e(f"v_readfirstlane_b32 s{S_TAG + 1}, v{V_TAG + 1}\nv_readfirstlane_b32 s{S_TAG}, v{V_TAG}")
        e(f"s_lshl2_add_u32 s{S_T0}, s{S_BH}, s{S_WAVE}\ns_cmp_lg_u32 s{S_TAG + 1}, 0\ns_cbranch_scc1 L_tag_ok")
        e(f"s_add_u32 s{S_SPIN}, s{S_SPIN}, 1\ns_cmp_ge_u32 s{S_SPIN}, 0x40000\ns_cbranch_scc1 L_tag_ok\ns_sleep 8")
        e(f"buffer_load_dwordx2 {v(V_TAG, 2)}, v{V_TAG + 2}, {srd_(SRD_DBG)}, 0 offen sc1")
        e("s_waitcnt vmcnt(0)\ns_branch L_tag")
        e("L_tag_ok:")
        e(f"s_lshl_b32 s{S_T0}, s{S_T0}, 7\ns_add_u32 s{S_T0}, s{S_T0}, {FLAG_A}")
        self.signal(S_T0)
        self.stamp("flag_a", "c")
        e("s_barrier")
        self.lwait0()
        for c in range(5):
            for hh in range(2):
                self.ds(rw(4, c, hh)[1])
        e("v_and_b32 v14, 7, v0\nv_lshlrev_b32 v14, 9, v14")
        e(f"s_lshl_b32 s{S_T1}, s{S_I}, 9\ns_sub_u32 s{S_T0}, s{S_T0}, s{S_T1}")
        self.stamp("bar_b", "c")
        self.poll("polla", 14, S_T0)
        self.stamp("poll_a", "c")
        for n in range(4, 4 + DEPTH):
            for j in range(3):
                for x in ldo(n, j):
                    e(x)
        self.lwait0()
        e(f"s_waitcnt vmcnt({3 * DEPTH - 3})")
        for n in range(4, 32):
            M, fill = kstep(n, n == 31)
            waits(fill)
            if n + DEPTH < 32:
                for j in range(3):
                    fill.setdefault(12 + j, []).extend(ldo(n + DEPTH, j))
            if n < 31:
                fill.setdefault(14, []).append(f"s_waitcnt vmcnt({3 * (min(DEPTH, 31 - n) - 1)})")
            self.stream(M, fill)
        self.stamp("mfma_done", "c")
        e(f"s_lshl3_add_u32 s{S_PB}, s{S_B}, s{S_I}")
        if o.get("fcopy"):
            e(f"s_lshl_b32 s{S_T2}, s{S_PB}, 6\ns_add_u32 s{S_T2}, s{S_T2}, s{S_WAVE}\ns_lshl_b32 s{S_T2}, s{S_T2}, 7")
        else:
            e(f"s_lshl2_add_u32 s{S_T2}, s{S_PB}, s{S_KG}\ns_lshl2_add_u32 s{S_T2}, s{S_T2}, s{S_WAVE}\ns_lshl_b32 s{S_T2}, s{S_T2}, 7")
        e(f"s_add_u32 s{S_N}, s{S_T2}, {FLAG_B}")
        e(f"s_mul_i32 s{S_PB}, s{S_PB}, {16 * 12288}\ns_lshl_b32 s{S_T0}, s{S_WAVE}, 12\ns_add_u32 s{S_PB}, s{S_PB}, s{S_T0}\ns_add_u32 s{S_PB}, s{S_PB}, {PART}")
        e(f"s_mul_i32 s{S_T0}, s{S_KG}, 12288\ns_add_u32 s{S_XO}, s{S_PB}, s{S_T0}")
        for c in range(3):
            e(f"s_add_u32 s{S_T0}, s{S_KG}, {c + 1}\ns_and_b32 s{S_T0}, s{S_T0}, 3\ns_mul_i32 s{S_T0}, s{S_T0}, {4 * 12288}\ns_add_u32 s{S_T0}, s{S_T0}, s{S_XO}")
            for j in range(3):
                e(f"buffer_store_dwordx4 {v(ACC(c, j), 4)}, v1, {srd_(SRD_WS)}, s{S_T0} offen offset:{j * 1024} sc1")
        for j in range(3):
            e(f"s_add_u32 s{S_T0}, s{S_XO}, {j * 4 * 12288}")
            e(f"buffer_store_dwordx4 {v(ACC(4, j), 4)}, v1, {srd_(SRD_WS)}, s{S_T0} offen offset:3072 sc1")
        e("v_and_b32 v14, 3, v0\nv_lshlrev_b32 v14, 9, v14")
        e(f"s_mul_i32 s{S_T0}, s{S_KG}, {4 * 12288}\ns_add_u32 s{S_PB}, s{S_PB}, s{S_T0}")
        e("v_and_b32 v15, 15, v0\nv_mul_u32_u24 v15, 1280, v15\nv_lshrrev_b32 v4, 4, v0\nv_lshl_add_u32 v15, v4, 3, v15")
        e("s_waitcnt vmcnt(0)")
        if o.get("fcopy"):
            e(f"v_lshlrev_b32 v4, 2, v14\ns_lshl_b32 s{S_T1}, s{S_KG}, 9\ns_add_u32 s{S_T1}, s{S_T1}, s{S_N}")
            self.signal(S_T1, 4, 15)
            self.stamp("flag_b", "c")
            e(f"s_lshl_b32 s{S_T1}, s{S_KG}, 11\ns_add_u32 s{S_N}, s{S_N}, s{S_T1}")
        else:
            self.signal(S_N)
            self.stamp("flag_b", "c")
            e(f"s_lshl_b32 s{S_T1}, s{S_KG}, 9\ns_sub_u32 s{S_N}, s{S_N}, s{S_T1}")
        self.poll("pollb", 14, S_N)
        self.stamp("poll_b", "c")
        RB = lambda m, sl: 76 + 16 * m + 4 * sl
        for m in range(4):
            e(f"s_add_u32 s{S_T0}, s{S_KG}, {m}\ns_and_b32 s{S_T0}, s{S_T0}, 3\ns_mul_i32 s{S_T0}, s{S_T0}, 12288\ns_add_u32 s{S_T0}, s{S_T0}, s{S_PB}")
            for sl in range(4):
                if m or sl == 3:
                    e(f"buffer_load_dwordx4 {v(RB(m, sl), 4)}, v1, {srd_(SRD_WS)}, s{S_T0} offen offset:{sl * 1024} sc1")
        e(f"s_mul_i32 s{S_T0}, s{S_B}, 3\ns_add_u32 s{S_T0}, s{S_T0}, s{S_WAVE}\ns_mul_i32 s{S_T0}, s{S_T0}, {48 * 1280}")
        e(f"s_mul_i32 s{S_T1}, s{S_I}, 160\ns_add_u32 s{S_T0}, s{S_T0}, s{S_T1}")
        e(f"s_mul_i32 s{S_T1}, s{S_KG}, {16 * 1280}\ns_add_u32 s{S_T1}, s{S_T1}, s{S_T0}\ns_add_u32 s{S_T1}, s{S_T1}, 128")
        e(f"s_cmp_eq_u32 s{S_KG}, 3\ns_cselect_b32 s{S_T1}, 0x7000000, s{S_T1}")
        e(f"s_lshl_b32 s{S_T2}, s{S_KG}, 5\ns_add_u32 s{S_T0}, s{S_T0}, s{S_T2}")
        e("s_waitcnt vmcnt(0)")
        for sl in range(4):
            a0 = ACC(3, sl) if sl < 3 else RB(0, 3)
            for r in (0, 2):
                e(f"v_pk_add_f32 {v(a0 + r, 2)}, {v(a0 + r, 2)}, {v(RB(1, sl) + r, 2)}")
                e(f"v_pk_add_f32 {v(RB(2, sl) + r, 2)}, {v(RB(2, sl) + r, 2)}, {v(RB(3, sl) + r, 2)}")
            for r in (0, 2):
                e(f"v_pk_add_f32 {v(a0 + r, 2)}, {v(a0 + r, 2)}, {v(RB(2, sl) + r, 2)}")
            e(f"v_cvt_pk_bf16_f32 v{RB(1, sl)}, v{a0}, v{a0 + 1}\nv_cvt_pk_bf16_f32 v{RB(1, sl) + 1}, v{a0 + 2}, v{a0 + 3}")
            e(f"buffer_store_dwordx2 {v(RB(1, sl), 2)}, v15, {srd_(SRD_OUT)}, s{S_T0 if sl < 3 else S_T1} offen")
            if sl < 2:
                e(f"s_add_u32 s{S_T0}, s{S_T0}, {16 * 1280}")
        if o["stamps"]:
            e("s_waitcnt vmcnt(0)")
            self.stamp("end", "c")
            e(f"s_cmp_lg_u32 s{S_WAVE}, {o.get('swave', 0)}\ns_cbranch_scc1 L_end")
            if o.get("dly"):
                a, b, k = o["dly"].split(",")
                reg = {x[0]: x[1] for x in self.stamps if x[2] == "c"}
                reg["start"] = 94
                e("s_waitcnt lgkmcnt(0)")
                e(f"s_sub_u32 s{S_T0}, s{reg[b]}, s{reg[a]}\ns_mul_i32 s{S_T0}, s{S_T0}, {k}\ns_min_u32 s{S_T0}, s{S_T0}, 50000")
                e("L_dly:")
                e(f"s_memrealtime s[{S_RET}:{S_RET + 1}]\ns_waitcnt lgkmcnt(0)")
                e(f"s_sub_u32 s{S_T1}, s{S_RET}, s{reg['end']}\ns_cmp_lt_u32 s{S_T1}, s{S_T0}\ns_cbranch_scc1 L_dly")
                e("s_branch L_end")
            self.stamp_store("c")
        e("L_end:\ns_endpgm")

    def build(self):
        self.sites = []
        self.prologue()
        self.loader()
        self.lq = []
        self.compute_setup()
        self.qphase()
        self.attention()
        self.projection()
        self.rare()
        self.e("L_code_end:")
        self.expand_stamps()
        bad = check(self.L)
        assert bad == 0, f"{bad} hazards"
        hdr = open("cdna_kernels/" + NAME + ".s.ref").read().split("; Override launch")[0]
        txt = hdr
        txt += "; @launch grid=(256,1,1) block=(256,1,1) lds=163840\n"
        if self.stamps:
            txt += "; stamps: " + " ".join(x[0] for x in self.stamps) + "\n"
        txt += f""".amdgcn_target "amdgcn-amd-amdhsa--gfx950"
.text
.globl {NAME}_kernel
.p2align 8
.type {NAME}_kernel,@function
{NAME}_kernel:
"""
        for ln in self.L:
            txt += (ln if ln.endswith(":") else "    " + ln) + "\n"
        txt += f"""
.section .rodata,"a"
.p2align 6
.amdhsa_kernel {NAME}_kernel
  .amdhsa_next_free_vgpr 512
  .amdhsa_next_free_sgpr 102
  .amdhsa_accum_offset 256
  .amdhsa_group_segment_fixed_size 0
  .amdhsa_kernarg_size 64
  .amdhsa_user_sgpr_count 2
  .amdhsa_user_sgpr_kernarg_segment_ptr 1
  .amdhsa_system_sgpr_workgroup_id_x 1
  .amdhsa_float_denorm_mode_32 3
.end_amdhsa_kernel
"""
        return txt


def main():
    out = sys.argv[1]
    kw = {}
    for arg in sys.argv[2:]:
        k, val = arg.split("=", 1)
        if val in ("True", "False"):
            val = val == "True"
        elif val.lstrip("-").isdigit() and k not in ("mapping",):
            val = int(val)
        kw[k] = val
    g = Gen(**kw)
    txt = g.build()
    open(out, "w").write(txt)
    print(out, "lines", len(g.L), "stamps", [x[0] for x in g.stamps])


if __name__ == "__main__":
    main()
```

```python
import math
import struct
import sys

from hazard import check, regs_of

NAME = "standalone__mha_block_cached__near_ridge"
STAMP_OFF = 0x8000000
LANE_OFF = 0x4000000
FLAG_A = 0x1000000
FLAG_B = 0x1100000
XID = 0x1200000
PART = 0x1400000
SPIN_MAX = 0x100000

DEFAULTS = dict(
    stamps=False,
    kvpol="nt",
    qpol="",
    wpol="",
    rot=2,
    pf_code=True,
    strided=True,
    krot=5,
    kxm=4,
    fcopy=True,
    pdelay=0,
    ssleep=2,
    wlag=3,
    w0=7,
    warmr=True,
    eprog=True,
    fast=False,
    odepth=5,
    flaga_at=3,
    flagb_at=10,
    opol="sc1",
    ftouch=True,
    fpol="sc1",
    kvq=7,
)

def f2u(x):
    return struct.unpack("<I", struct.pack("<f", x))[0]


def v(a, n=1):
    return f"v{a}" if n == 1 else f"v[{a}:{a + n - 1}]"


def a_(a, n=1):
    return f"a{a}" if n == 1 else f"a[{a}:{a + n - 1}]"


def srd_(d):
    return f"s[{d}:{d + 3}]"


S_WAVE = 3
SRD_K, SRD_V, SRD_X, SRD_WQ, SRD_WO, SRD_DBG, SRD_WS, SRD_OUT = 20, 24, 28, 32, 36, 40, 44, 48
S_H, S_B, S_BH = 52, 53, 54
S_T0, S_T1, S_T2 = 55, 56, 57
S_RET = 58
S_CNT, S_SLOT, S_NEED, S_MASK = 60, 61, 62, 63
S_J, S_KG, S_I, S_SPIN = 64, 65, 66, 67
S_N, S_MINP, S_PUB, S_FULL = 68, 69, 70, 71
S_C, S_XO, S_WO_, S_REQ, S_OB, S_PB = 72, 73, 74, 75, 76, 77
S_STAMP = 4
SRD_CODE = 96
S_TAG = 100
S_FLIP = 68
S_FAST = 69
S_ROT = 62

SYNC = 163840 - 1024
QSLOT = 34816
QS0 = SYNC - 3 * QSLOT
QEND = SYNC
KSTEP = 5120

O_ = lambda j, t: 16 + 32 * j + 4 * t
L_ = lambda j: 112 + 4 * j
NM = lambda j: 124 + 4 * j
S_ = lambda j, u: 136 + 8 * j + 4 * u
E_ = 160
P_ = lambda j: 168 + 4 * j
Q_ = lambda j, s: 180 + 16 * j + 4 * s
AK = lambda s: 228 + s
AV = lambda t: 232 + t
AW = lambda t: 240 + t
AX = lambda s: 248 + s
V_ACC = 250
ONES = 252
V_TAG = 240
V_LA, V_L, V_PA, V_P = 4, 5, 6, 7
RW = 8
KF = lambda u, s: 16 * u + 4 * s
VF = lambda t: 32 + 4 * t
WF = lambda t: 4 * t
XF = lambda p, j: 32 + 12 * p + 4 * j


NRES = 19


def waddr(n):
    if n < 6:
        return 65536 + (13 + n) * KSTEP
    if n < NRES:
        return 65536 + (n - 6) * KSTEP
    return (n - NRES) * KSTEP if n < 31 else waddr(0)


def wbase(n):
    a = waddr(n)
    if a < 65536:
        return 0, a
    if a < 65536 + 12 * KSTEP:
        return 1, a - 65536
    return 2, a - 65536 - 12 * KSTEP


class Gen:
    def __init__(self, **kw):
        self.o = dict(DEFAULTS)
        self.o.update(kw)
        self.L = []
        self.lq = []
        self.vq = []
        self.stamps = []
        self.strict = False

    def e(self, s):
        for ln in s.split("\n"):
            ln = ln.strip()
            if ln:
                self.L.append(ln)

    def ds(self, text):
        self.e(text)
        dst = text.split(None, 1)[1].split(",")[0]
        self.lq.append(regs_of(dst) if "read" in text.split()[0] else set())

    def lwait(self, regs):
        idx = -1
        for i, d in enumerate(self.lq):
            if d & regs:
                idx = i
        if idx < 0:
            return False
        n = min(len(self.lq) - 1 - idx, 15)
        self.e(f"s_waitcnt lgkmcnt({n})")
        self.lq = self.lq[len(self.lq) - n:] if n else []
        return True

    def lwait0(self):
        self.e("s_waitcnt lgkmcnt(0)")
        self.lq = []

    def vwait(self, tag):
        if tag not in self.vq:
            return
        idx = max(i for i, t in enumerate(self.vq) if t == tag)
        n = min(len(self.vq) - 1 - idx, 63)
        self.e(f"s_waitcnt vmcnt({n})")
        self.vq = self.vq[len(self.vq) - n:] if n else []

    def mfma(self, d, a, b, c):
        w = self.lwait(regs_of(a) | regs_of(b))
        assert not (w and self.strict), f"unplanned wait before mfma {d} {a} {b}"
        self.e(f"v_mfma_f32_16x16x32_bf16 {d}, {a}, {b}, {c}")

    def stream(self, M, fill):
        for k, m in enumerate(M):
            self.mfma(*m)
            for x in fill.get(k, []):
                if isinstance(x, str):
                    self.e(x)
                elif x[0] == "ds":
                    self.ds(x[1])
                elif x[0] == "wait":
                    self.lwait(x[1])
                else:
                    self.lwait0()

    def stamp(self, name, role):
        only = self.o.get("only")
        if self.o["stamps"] and (not only or name in ("start", "end") or name in only.split(",")):
            names = [name]
            if self.o.get("both") and name in self.o["both"].split(","):
                names.append(name + "_c")
            for nm in names:
                n = len([1 for x in self.stamps if x[2] == role])
                k = 78 + 2 * n if n < 8 else S_STAMP + 2 * (n - 8)
                op = "s_memtime" if (self.o.get("clk") or nm.endswith("_c")) else "s_memrealtime"
                self.e(f"{op} s[{k}:{k + 1}]")
                self.stamps.append((nm, k, role))

    def stamp_store(self, role):
        if self.o["stamps"]:
            self.e(f"@STAMPS {role}")

    def expand_stamps(self):
        out = []
        n = len(self.stamps)
        for ln in self.L:
            if ln.startswith("@STAMPS"):
                role = ln.split()[1]
                out.append("s_waitcnt lgkmcnt(0)")
                out += [f"s_mul_i32 s{S_T0}, s2, {n * 8}", f"s_add_u32 s{S_T0}, s{S_T0}, {STAMP_OFF}", "v_mov_b32 v3, 0"]
                for k, (_, r, ro) in enumerate(self.stamps):
                    if ro == role:
                        out += [f"v_mov_b32 v4, s{r}", f"v_mov_b32 v5, s{r + 1}",
                                f"buffer_store_dwordx2 v[4:5], v3, {srd_(SRD_WS)}, s{S_T0} offen offset:{8 * k}"]
            else:
                out.append(ln)
        self.L = out

    def srd(self, d, lo, off, size):
        if off:
            self.e(f"s_add_u32 s{d}, s{lo}, {off}\ns_addc_u32 s{d + 1}, s{lo + 1}, 0")
        else:
            self.e(f"s_mov_b32 s{d}, s{lo}\ns_mov_b32 s{d + 1}, s{lo + 1}")
        if size is not None:
            self.e(f"s_mov_b32 s{d + 2}, {size}")
        self.e(f"s_mov_b32 s{d + 3}, 0x20000")

    def code_srd(self):
        e = self.e
        n = getattr(self, "npc", 0)
        self.npc = n + 1
        e(f"s_getpc_b64 s[{SRD_CODE}:{SRD_CODE + 1}]\nL_pc{n}:")
        e(f"s_sub_u32 s{SRD_CODE}, s{SRD_CODE}, L_pc{n}-{NAME}_kernel\ns_subb_u32 s{SRD_CODE + 1}, s{SRD_CODE + 1}, 0")
        e(f"s_mov_b32 s{SRD_CODE + 2}, L_code_end-{NAME}_kernel\ns_mov_b32 s{SRD_CODE + 3}, 0x20000")

    def prologue(self):
        e = self.e
        e("s_cmp_ge_u32 s2, 256\ns_cbranch_scc1 L_end")
        e("s_load_dwordx8 s[4:11], s[0:1], 0")
        e("s_load_dwordx8 s[12:19], s[0:1], 32")
        self.stamp("start", "l")
        if self.o.get("dly"):
            e("s_memrealtime s[94:95]")
        e("v_lshrrev_b32 v1, 6, v0")
        e("v_and_b32 v0, 63, v0")
        e(f"v_readfirstlane_b32 s{S_WAVE}, v1")
        e(f"s_and_b32 s{S_KG}, s2, 3\ns_bfe_u32 s{S_I}, s2, 0x30003\ns_lshr_b32 s{S_J}, s2, 3")
        e(f"s_and_b32 s{S_B}, s2, 4\ns_lshr_b32 s{S_T2}, s2, 6\ns_add_u32 s{S_B}, s{S_B}, s{S_T2}")
        e(f"s_lshl3_add_u32 s{S_H}, s{S_KG}, s{S_I}")
        e(f"s_cmp_lg_u32 s{S_WAVE}, 3\ns_cbranch_scc1 L_compute")

    def loader(self):
        e, o = self.e, self.o
        nq, nkv = o.get("q_noload"), o.get("kv_noload")
        WQA, XA, KA, VA, DA = 20, 24, 28, 32, 36
        e("v_lshrrev_b32 v1, 4, v0\nv_and_b32 v2, 15, v0\nv_lshrrev_b32 v3, 3, v0\nv_and_b32 v16, 7, v0")
        for b in range(0, 4, 2):
            e(f"v_or_b32 v17, {(b >> 1) << 2}, v1\nv_lshlrev_b32 v17, 1, v17\nv_xor_b32 v17, v17, v2\nv_lshlrev_b32 v17, 4, v17")
            e("v_lshl_add_u32 v17, v1, 13, v17")
            for bb in (b, b + 1):
                e(f"v_add_u32 v{WQA + bb}, {bb * 4 * 8192 - bb * 1024}, v17")
        e("v_mul_u32_u24 v18, 1280, v3")
        for b in range(2):
            e(f"v_or_b32 v17, {4 * b}, v1\nv_xor_b32 v17, v17, v16\nv_lshl_add_u32 v17, v17, 4, v18")
            for bb in (b, b + 2):
                e(f"v_add_u32 v{XA + bb}, {bb * 8 * 1280 - bb * 1024}, v17")
        if o["rot"] == 2:
            e(f"s_add_u32 s{S_C}, s{S_I}, s{S_T2}\ns_and_b32 s{S_C}, s{S_C}, 1\ns_mul_i32 s{S_C}, s{S_C}, 5")
        elif o["rot"] == 4:
            e(f"s_add_u32 s{S_C}, s{S_I}, s{S_T2}\ns_and_b32 s{S_C}, s{S_C}, 3\ns_mul_i32 s{S_C}, s{S_C}, 5")
            e(f"s_add_u32 s{S_C}, s{S_C}, 1\ns_lshr_b32 s{S_C}, s{S_C}, 1")
        else:
            e(f"s_mov_b32 s{S_C}, 0")
        e(f"s_mov_b32 s{S_SLOT}, {QS0}\ns_mul_i32 s{S_T1}, s{S_B}, 184320\ns_lshl_b32 s{S_T2}, s{S_H}, 8")
        e("s_waitcnt lgkmcnt(0)")
        self.srd(SRD_WQ, 10, f"s{S_T2}", None)
        e(f"s_sub_u32 s{SRD_WQ + 2}, {0 if nq else 5242880}, {0 if nq else 's' + str(S_T2)}")
        self.srd(SRD_X, 4, f"s{S_T1}", 0 if nq else 184320)
        e("s_branch L_ldq_go")

        e("L_qstep:")
        e(f"s_lshl_b32 s{S_WO_}, s{S_C}, 19\ns_lshl_b32 s{S_XO}, s{S_C}, 7")
        for a in range(5):
            if a < 4:
                e(f"s_add_u32 m0, s{S_SLOT}, {a * 4096}")
                e(f"s_add_u32 s{S_T0}, s{S_WO_}, {a * 16 * 8192}")
                for b in range(4):
                    e(f"buffer_load_dwordx4 v{WQA + b}, {srd_(SRD_WQ)}, s{S_T0} offen offset:{b * 1024} {o['qpol']} lds")
            e(f"s_add_u32 m0, s{S_SLOT}, {16384 + a * 4096}")
            e(f"s_add_u32 s{S_T0}, s{S_XO}, {a * 32 * 1280}")
            for b in range(4 if a < 4 else 2):
                e(f"buffer_load_dwordx4 v{XA + b}, {srd_(SRD_X)}, s{S_T0} offen offset:{b * 1024} {o['qpol']} lds")
        e(f"s_add_u32 s{S_C}, s{S_C}, 1\ns_cmp_eq_u32 s{S_C}, 10\ns_cselect_b32 s{S_C}, 0, s{S_C}")
        e(f"s_add_u32 s{S_SLOT}, s{S_SLOT}, {QSLOT}\ns_cmp_eq_u32 s{S_SLOT}, {QEND}\ns_cselect_b32 s{S_SLOT}, {QS0}, s{S_SLOT}")
        e(f"s_setpc_b64 s[{S_RET}:{S_RET + 1}]")

        def qstep(s):
            e(f"s_call_b64 s[{S_RET}:{S_RET + 1}], L_qstep")
            self.vq += [f"q{s}"] * 34

        def qbar(s):
            self.vwait(f"q{s}")
            e("s_barrier")

        def tile(srd, areg, idx, lds, tag):
            if o["strided"]:
                e(f"s_add_u32 s{S_T2}, s{S_ROT}, {idx}\ns_and_b32 s{S_T2}, s{S_T2}, 31\ns_lshl_b32 s{S_T2}, s{S_T2}, 8")
            elif o.get("linrot"):
                e(f"s_add_u32 s{S_T2}, s{S_ROT}, {idx}\ns_and_b32 s{S_T2}, s{S_T2}, 31\ns_lshl_b32 s{S_T2}, s{S_T2}, 13")
            else:
                e(f"s_lshl_b32 s{S_T2}, {idx}, 13")
            for a in range(2):
                e(f"s_add_u32 m0, {lds}, {a * 4096}" if isinstance(lds, str) else f"s_mov_b32 m0, {lds + a * 4096}")
                e(f"s_add_u32 s{S_T0}, s{S_T2}, {a * (131072 if o['strided'] else 4096)}")
                for b in range(4):
                    e(f"buffer_load_dwordx4 v{areg + b}, {srd_(srd)}, s{S_T0} offen offset:{b * 1024} {o['kvpol']} lds")
            self.vq += [tag] * 8

        slot = lambda i: (i if i < 8 else i & 3) * 16384
        K = lambda i: tile(SRD_K, KA, i, slot(i), f"k{i}")
        V = lambda i: tile(SRD_V, VA, i, slot(i) + 8192, f"v{i}")

        e("L_ldq_go:")
        self.stamp("go", "l")
        qstep(0)
        rs, bs = (13, 32768 - 1024) if o["strided"] else (8, 0)
        for b in range(4):
            e(f"v_or_b32 v17, {4 * b}, v1\nv_xor_b32 v17, v17, v2\nv_lshlrev_b32 v17, 4, v17\nv_lshl_add_u32 v17, v1, {rs}, v17")
            e(f"v_add_u32 v{KA + b}, {b * bs}, v17")
        for b in range(2):
            e(f"v_or_b32 v17, {4 * b}, v1\nv_lshlrev_b32 v17, 1, v17\nv_xor_b32 v17, v17, v2\nv_lshlrev_b32 v17, 4, v17\nv_lshl_add_u32 v17, v1, {rs}, v17")
            e(f"v_add_u32 v{VA + b}, {b * bs}, v17\nv_add_u32 v{VA + b + 2}, {(b + 2) * bs}, v17")
        e(f"s_lshl_b32 s{S_BH}, s{S_B}, 5\ns_add_u32 s{S_BH}, s{S_BH}, s{S_H}\ns_lshl_b32 s{S_T0}, s{S_BH}, 18")
        self.srd(SRD_K, 6, f"s{S_T0}", 0 if nkv else 0x40000)
        self.srd(SRD_V, 8, f"s{S_T0}", 0 if nkv else 0x40000)
        self.srd(SRD_WO, 12, None, 5242880)
        self.srd(SRD_WS, 18, None, 0x10000000)
        self.srd(SRD_DBG, 16, None, 256)
        e(f"s_mul_i32 s{S_ROT}, s{S_J}, {o['krot']}\ns_and_b32 s{S_T0}, s2, 7\ns_mul_i32 s{S_T0}, s{S_T0}, {o['kxm']}")
        e(f"s_add_u32 s{S_ROT}, s{S_ROT}, s{S_T0}")
        e(f"s_add_u32 s{S_T0}, s{S_KG}, 1")
        for n in range(5):
            e(f"v_add_u32 v16, {64 * n}, v0\nv_mul_u32_u24 v17, 6554, v16\nv_lshrrev_b32 v17, 16, v17")
            e("v_mul_u32_u24 v18, 10, v17\nv_sub_u32 v16, v16, v18\nv_lshrrev_b32 v18, 1, v16")
            e(f"v_add_u32 v19, s{S_T0}, v18\nv_and_b32 v19, 3, v19\nv_cmp_gt_u32 vcc, 4, v18")
            e("v_and_b32 v16, 1, v16\nv_mul_u32_u24 v17, 1280, v17\nv_cndmask_b32 v18, v18, v19, vcc")
            e("v_lshl_add_u32 v17, v16, 4, v17\nv_lshl_add_u32 v17, v18, 5, v17")
            e(f"v_subrev_u32 v{DA + n}, {1024 * n if n < 4 else 0}, v17")
        e("v_mov_b32 v54, 0\nv_and_b32 v55, 7, v0\nv_lshlrev_b32 v55, 7, v55")
        e(f"v_lshlrev_b32 v16, 4, v0\nv_add_u32 v16, {SYNC}, v16\nv_mov_b64 v[48:49], 0\nv_mov_b64 v[50:51], 0")
        e("ds_write_b128 v16, v[48:51]")
        e(f"v_lshlrev_b32 v{V_LA}, 2, v0\nv_add_u32 v{V_LA}, {SYNC}, v{V_LA}\nv_mov_b32 v{V_L}, 0")
        e(f"v_min_u32 v{V_PA}, 2, v0\nv_lshlrev_b32 v{V_PA}, 8, v{V_PA}\nv_add_u32 v{V_PA}, {SYNC + 256}, v{V_PA}")
        e("s_waitcnt lgkmcnt(0)")
        kv = [lambda: K(0), lambda: K(1), lambda: V(0), lambda: K(2), lambda: V(1), lambda: K(3), lambda: V(2)]
        kvq = o["kvq"]
        plan = {s: [] for s in range(10)}
        for n, f in enumerate(kv):
            plan[kvq + n * (10 - kvq) // 7].append(f)
        qstep(1)
        for s in range(10):
            qbar(s)
            if s + 2 < 10:
                qstep(s + 2)
            if s == o.get("warmq", -1):
                e(f"s_lshl_b32 s{S_T1}, s{S_KG}, 5\ns_add_u32 s{S_T1}, s{S_T1}, s{S_J}\ns_mul_i32 s{S_T1}, s{S_T1}, 40960")
                e("v_lshlrev_b32 v18, 7, v0")
                for n in range(5):
                    e(f"buffer_load_dword v19, v18, {srd_(SRD_WO)}, s{S_T1} offen\ns_add_u32 s{S_T1}, s{S_T1}, 8192")
                    self.vq.append("warm")
            if s == kvq:
                self.stamp("kv_start", "l")
            for f in plan[s]:
                f()
        self.vwait("k0")
        e("s_barrier")
        self.stamp("b_pre", "l")

        def publish():
            e(f"v_writelane_b32 v{V_L}, s{S_PUB}, 0\nds_write_b32 v{V_LA}, v{V_L}")

        nneed = [0]

        def need():
            k = nneed[0]
            nneed[0] += 1
            e(f"s_cmp_ge_u32 s{S_MINP}, s{S_REQ}\ns_cbranch_scc1 L_have{k}")
            e(f"s_call_b64 s[{S_RET}:{S_RET + 1}], L_need\nL_have{k}:")

        W0 = o["w0"]
        assert W0 + 6 >= 11 and W0 + NRES <= 31

        def wsrc(n):
            if isinstance(n, str):
                e(f"s_lshr_b32 s{S_T1}, {n}, 2\ns_add_u32 s{S_T1}, s{S_T1}, s{S_I}\ns_and_b32 s{S_T1}, s{S_T1}, 7\ns_and_b32 s{S_T0}, {n}, 3")
                e(f"s_lshl2_add_u32 s{S_T1}, s{S_T1}, s{S_T0}\ns_mul_i32 s{S_WO_}, s{S_T1}, {32 * 1280}\ns_add_u32 s{S_WO_}, s{S_WO_}, s{S_OB}")
            elif n % 4 == 0 or n == NRES:
                e(f"s_add_u32 s{S_T1}, s{S_I}, {n >> 2}\ns_and_b32 s{S_T1}, s{S_T1}, 7")
                e(f"s_mul_i32 s{S_WO_}, s{S_T1}, {128 * 1280}\ns_add_u32 s{S_WO_}, s{S_WO_}, s{S_OB}")
                if n % 4:
                    e(f"s_add_u32 s{S_WO_}, s{S_WO_}, {(n % 4) * 32 * 1280}")

        def wstep(lds):
            e(f"s_mov_b32 m0, {lds}\ns_mov_b32 s{S_T0}, s{S_WO_}")
            for n in range(4):
                e(f"buffer_load_dwordx4 v{DA + n}, {srd_(SRD_WO)}, s{S_T0} offen offset:{n * 1024} {o['wpol']} lds")
            e(f"s_add_u32 m0, {lds}, 4096" if isinstance(lds, str) else f"s_mov_b32 m0, {lds + 4096}")
            e(f"s_add_u32 s{S_WO_}, s{S_WO_}, {32 * 1280}")
            e(f"buffer_load_dwordx4 v{DA + 4}, {srd_(SRD_WO)}, s{S_T0} offen {o['wpol']} lds")
            self.vq += ["w"] * 5

        e(f"s_mul_i32 s{S_OB}, s{S_KG}, {1024 * 1280}\ns_mul_i32 s{S_T0}, s{S_I}, 160\ns_add_u32 s{S_OB}, s{S_OB}, s{S_T0}")
        e("v_lshrrev_b32 v18, 1, v0\nv_mul_u32_u24 v18, 1280, v18\nv_and_b32 v19, 1, v0\nv_mul_u32_u24 v19, 156, v19\nv_add_u32 v46, v18, v19")
        e(f"s_mov_b32 s{S_N}, 3\ns_mov_b32 s{S_MINP}, 0\ns_mov_b32 s{S_PUB}, 0")
        e("L_kv:")
        e(f"s_cmp_ge_u32 s{S_N}, 11\ns_cselect_b32 s{S_T0}, 2, 6\ns_max_u32 s{S_REQ}, s{S_N}, 6\ns_sub_u32 s{S_REQ}, s{S_REQ}, s{S_T0}")
        need()
        e(f"s_add_u32 s{S_XO}, s{S_N}, 1\ns_cmp_ge_u32 s{S_XO}, 8\ns_cselect_b32 s{S_T1}, 3, 7\ns_and_b32 s{S_T1}, s{S_XO}, s{S_T1}\ns_lshl_b32 s{S_T1}, s{S_T1}, 14")
        tile(SRD_K, KA, f"s{S_XO}", f"s{S_T1}", "")
        e(f"s_cmp_ge_u32 s{S_N}, 8\ns_cselect_b32 s{S_T1}, 3, 7\ns_and_b32 s{S_T1}, s{S_N}, s{S_T1}\ns_lshl_b32 s{S_T1}, s{S_T1}, 14\ns_add_u32 s{S_T1}, s{S_T1}, 8192")
        tile(SRD_V, VA, f"s{S_N}", f"s{S_T1}", "")
        e(f"s_sub_u32 s{S_C}, s{S_N}, {W0}\ns_cmp_ge_u32 s{S_C}, {NRES}\ns_cbranch_scc1 L_kv_now")
        wsrc(f"s{S_C}")
        e(f"s_cmp_lt_u32 s{S_C}, 6\ns_cselect_b32 s{S_T1}, 13, -6\ns_add_u32 s{S_T1}, s{S_T1}, s{S_C}")
        e(f"s_mul_i32 s{S_SLOT}, s{S_T1}, {KSTEP}\ns_add_u32 s{S_SLOT}, s{S_SLOT}, 65536")
        wstep(f"s{S_SLOT}")
        e("s_branch L_kv_pub")
        e("L_kv_now:")
        if o["warmr"]:
            e(f"s_sub_u32 s{S_C}, s{S_C}, {NRES}\ns_cmp_ge_u32 s{S_C}, 4\ns_cbranch_scc1 L_kv_pub")
            e(f"s_and_b32 s{S_T0}, s{S_B}, 3\ns_lshl2_add_u32 s{S_C}, s{S_C}, s{S_T0}\ns_add_u32 s{S_C}, s{S_C}, {NRES}")
            e(f"s_cmp_ge_u32 s{S_C}, 32\ns_cbranch_scc1 L_kv_pub")
            wsrc(f"s{S_C}")
            e(f"buffer_load_dword v19, v46, {srd_(SRD_WO)}, s{S_WO_} offen")
        e("L_kv_pub:")
        e(f"s_sub_u32 s{S_T1}, s{S_N}, 1\ns_max_u32 s{S_PUB}, s{S_PUB}, s{S_T1}")
        e(f"s_waitcnt vmcnt({o.get('kvwin', 32)})")
        publish()
        if o.get("tsteps"):
            e(f"s_memrealtime s[{S_RET}:{S_RET + 1}]\ns_waitcnt lgkmcnt(0)\ns_mov_b32 m0, s{S_N}\nv_writelane_b32 v44, s{S_RET}, m0")
        e(f"s_and_b32 s{S_T0}, s{S_N}, 3\ns_cmp_eq_u32 s{S_T0}, 3\ns_cbranch_scc1 L_kv_x")
        e("L_kv_n:")
        e(f"s_add_u32 s{S_N}, s{S_N}, 1\ns_cmp_lt_u32 s{S_N}, 31\ns_cbranch_scc1 L_kv")
        e(f"s_mov_b32 s{S_REQ}, 29")
        need()
        self.vq = ["s29"] * 16 + ["s30"] * 16
        V(31)
        self.stamp("kv_end", "l")
        for tag, val in (("s29", 30), ("s30", 31), ("v31", 32)):
            self.vwait(tag)
            e(f"s_max_u32 s{S_PUB}, s{S_PUB}, {val}")
            publish()
        self.stamp("kv_landed", "l")
        lag = o["wlag"]
        have = 29
        for n in range(NRES, 32):
            req = 30 + ((waddr(n) + KSTEP - 1) >> 14) if n < 31 else 34
            if req > have:
                if n == 31:
                    e(f"s_waitcnt vmcnt(0)\ns_mov_b32 s{S_PUB}, {32 + n - NRES}")
                    publish()
                e(f"s_mov_b32 s{S_REQ}, {req}")
                need()
                have = req
            wsrc(n)
            wstep(waddr(n))
            if n < 31 and n - NRES + 1 > lag:
                e(f"s_waitcnt vmcnt({5 * lag})")
                e(f"s_max_u32 s{S_PUB}, s{S_PUB}, {32 + n - NRES + 1 - lag}")
                publish()
            if o.get("tsteps"):
                e(f"s_memrealtime s[{S_RET}:{S_RET + 1}]\ns_waitcnt lgkmcnt(0)\nv_writelane_b32 v44, s{S_RET}, {32 + n}")
        self.stamp("wo_issued", "l")
        e(f"s_waitcnt vmcnt(0)\ns_mov_b32 s{S_PUB}, {32 + 32 - NRES}")
        publish()
        self.stamp("wo_landed", "l")
        if o.get("wbl2"):
            if o["wbl2"] > 1:
                e(f"s_and_b32 s{S_T0}, s{S_J}, {o['wbl2'] - 1}\ns_cmp_lg_u32 s{S_T0}, 0\ns_cbranch_scc1 L_nowb")
            e("buffer_wbl2 sc1\nL_nowb:")
        if o.get("tsteps"):
            e(f"s_lshl_b32 s{S_T0}, s2, 8\ns_add_u32 s{S_T0}, s{S_T0}, {LANE_OFF}\nv_lshlrev_b32 v45, 2, v0")
            e("v_subrev_u32 v44, s78, v44")
            e(f"buffer_store_dword v44, v45, {srd_(SRD_WS)}, s{S_T0} offen")
        self.stamp_store("l")
        e("s_endpgm")

        e("L_kv_x:")
        TG, ZV = 52, 54
        e(f"s_cmp_lg_u32 s{S_N}, 3\ns_cbranch_scc1 L_kv_x7")
        e(f"buffer_load_dwordx2 {v(TG, 2)}, v{ZV}, {srd_(SRD_DBG)}, 0 offen sc1")
        e("s_branch L_kv_n")
        e("L_kv_x7:")
        e(f"s_cmp_lg_u32 s{S_N}, 7\ns_cbranch_scc1 L_kv_x19")
        e(f"s_mov_b32 s{S_SPIN}, 0")
        e("L_tag:")
        e(f"v_readfirstlane_b32 s{S_TAG + 1}, v{TG + 1}\nv_readfirstlane_b32 s{S_TAG}, v{TG}")
        e(f"s_add_u32 s{S_SPIN}, s{S_SPIN}, 1\ns_cmp_lg_u32 s{S_TAG + 1}, 0\ns_cbranch_scc1 L_tag_ok")
        e(f"s_cmp_ge_u32 s{S_SPIN}, 0x40000\ns_cbranch_scc1 L_tag_ok\ns_sleep 8")
        e(f"buffer_load_dwordx2 {v(TG, 2)}, v{ZV}, {srd_(SRD_DBG)}, 0 offen sc1")
        e("s_waitcnt vmcnt(0)\ns_branch L_tag")
        e("L_tag_ok:")
        e(f"v_writelane_b32 v{V_L}, s{S_TAG}, 1\nv_writelane_b32 v{V_L}, s{S_TAG + 1}, 2")
        e(f"s_getreg_b32 s{S_T0}, hwreg(HW_REG_XCC_ID, 0, 4)\ns_lshl_b32 s{S_T0}, s{S_T0}, 24")
        e(f"v_or_b32 v{TG + 1}, s{S_T0}, v{TG + 1}")
        e(f"s_lshl_b32 s{S_T0}, s{S_BH}, 7\ns_add_u32 s{S_T0}, s{S_T0}, {XID}\ns_mov_b64 exec, 1")
        e(f"buffer_store_dwordx2 {v(TG, 2)}, v{ZV}, {srd_(SRD_WS)}, s{S_T0} offen sc1")
        e("s_mov_b64 exec, -1\ns_branch L_kv_n")
        e("L_kv_x19:")
        e(f"s_cmp_lg_u32 s{S_N}, 19\ns_cbranch_scc1 L_kv_x23")
        e(f"s_sub_u32 s{S_PB}, s{S_BH}, s{S_I}\ns_lshl_b32 s{S_PB}, s{S_PB}, 7\ns_add_u32 s{S_PB}, s{S_PB}, {XID}")
        e(f"buffer_load_dwordx2 v[56:57], v55, {srd_(SRD_WS)}, s{S_PB} offen sc1")
        e("s_branch L_kv_n")
        e("L_kv_x23:")
        e(f"s_cmp_lg_u32 s{S_N}, 23\ns_cbranch_scc1 L_kv_x27")
        e(f"s_mov_b32 s{S_SPIN}, 0")
        e("L_xid:")
        e(f"v_and_b32 v59, 0xf0ffffff, v57\nv_mov_b32 v58, v56\nv_cmp_ne_u64 vcc, s[{S_TAG}:{S_TAG + 1}], v[58:59]")
        e(f"s_add_u32 s{S_SPIN}, s{S_SPIN}, 1\ns_cmp_ge_u32 s{S_SPIN}, 0x40000\ns_cbranch_scc1 L_xid_ok")
        e("s_cbranch_vccz L_xid_ok\ns_sleep 8")
        e(f"buffer_load_dwordx2 v[56:57], v55, {srd_(SRD_WS)}, s{S_PB} offen sc1")
        e("s_waitcnt vmcnt(0)\ns_branch L_xid")
        e("L_xid_ok:")
        e(f"v_cmp_ne_u64 vcc, {v(TG, 2)}, v[56:57]\ns_nop 4")
        e(f"s_cmp_eq_u64 vcc, 0\ns_cselect_b32 s{S_T0}, {1 if o['fast'] else 0}, 0")
        e(f"v_writelane_b32 v{V_L}, s{S_T0}, 3")
        e("s_branch L_kv_n")
        e("L_kv_x27:")
        e(f"s_cmp_lg_u32 s{S_N}, 27\ns_cbranch_scc1 L_kv_n")
        if o["ftouch"]:
            e(f"s_lshl_b32 s{S_T0}, s{S_BH}, 9\ns_add_u32 s{S_T0}, s{S_T0}, {FLAG_A}\ns_mov_b64 exec, 7")
            e(f"buffer_load_dword v19, v55, {srd_(SRD_WS)}, s{S_T0} offen")
            e("s_mov_b64 exec, -1")
        if o["pf_code"]:
            self.code_srd()
            e(f"s_and_b32 s{S_T0}, s{S_J}, 3\ns_lshl_b32 s{S_T0}, s{S_T0}, 13\nv_lshlrev_b32 v18, 7, v0")
            e(f"buffer_load_dword v19, v18, {srd_(SRD_CODE)}, s{S_T0} offen")
        e("s_branch L_kv_n")

        def rdprog():
            e(f"ds_read_b32 v{V_P}, v{V_PA}\ns_waitcnt lgkmcnt(0)")
            e(f"v_readlane_b32 s{S_MINP}, v{V_P}, 0\nv_readlane_b32 s{S_T0}, v{V_P}, 1\nv_readlane_b32 s{S_T1}, v{V_P}, 2\ns_nop 0")
            e(f"s_min_u32 s{S_MINP}, s{S_MINP}, s{S_T0}\ns_min_u32 s{S_MINP}, s{S_MINP}, s{S_T1}")
            e(f"s_cmp_ge_u32 s{S_MINP}, s{S_REQ}\ns_cbranch_scc1 L_need_ret")

        e("L_need:")
        e(f"s_mov_b32 s{S_SPIN}, 0")
        e("L_need_spin:")
        rdprog()
        e(f"s_add_u32 s{S_SPIN}, s{S_SPIN}, 1\ns_cmp_lt_u32 s{S_SPIN}, {SPIN_MAX}\ns_cbranch_scc1 L_need_spin")
        e("L_need_ret:")
        e(f"s_setpc_b64 s[{S_RET}:{S_RET + 1}]")

    def compute_setup(self):
        e = self.e
        e("L_compute:")
        if self.o["pf_code"]:
            self.code_srd()
            e(f"s_and_b32 s{S_T0}, s{S_J}, 3\ns_lshl_b32 s{S_T0}, s{S_T0}, 13\nv_lshlrev_b32 v1, 7, v0")
            e(f"s_cmp_lg_u32 s{S_WAVE}, 0\ns_cbranch_scc1 L_nopf")
            e(f"buffer_load_dword v251, v1, {srd_(SRD_CODE)}, s{S_T0} offen")
            e("L_nopf:")
        e("s_waitcnt lgkmcnt(0)")
        self.srd(SRD_OUT, 14, None, 1474560)
        self.srd(SRD_DBG, 16, None, 256)
        self.srd(SRD_WS, 18, None, 0x10000000)
        e(f"s_lshl_b32 s{S_BH}, s{S_B}, 5\ns_add_u32 s{S_BH}, s{S_BH}, s{S_H}")
        e(f"s_lshl2_add_u32 s{S_T0}, s2, s{S_WAVE}\ns_cmp_lg_u32 s{S_T0}, 1\ns_cbranch_scc1 L_notag")
        e(f"s_memrealtime s[{S_RET}:{S_RET + 1}]\nv_mov_b32 v16, 0\ns_waitcnt lgkmcnt(0)")
        e(f"s_or_b32 s{S_RET + 1}, s{S_RET + 1}, 0x40000000")
        e(f"v_mov_b32 v18, s{S_RET}\nv_mov_b32 v19, s{S_RET + 1}\ns_mov_b64 exec, 1")
        e(f"buffer_store_dwordx2 v[18:19], v16, {srd_(SRD_DBG)}, 0 offen sc1")
        e("s_mov_b64 exec, -1\ns_nop 1")
        e("L_notag:")
        e("v_lshrrev_b32 v1, 4, v0\nv_and_b32 v2, 15, v0\nv_lshrrev_b32 v3, 2, v2\nv_and_b32 v16, 3, v0")
        e("v_and_b32 v17, 1, v1\nv_lshlrev_b32 v18, 1, v17\nv_lshl_or_b32 v17, v17, 2, v3\nv_lshrrev_b32 v19, 1, v1\nv_or_b32 v18, v18, v19")
        e("v_lshl_add_u32 v19, v1, 3, v3\nv_lshlrev_b32 v19, 8, v19\nv_lshl_add_u32 v19, v16, 3, v19")
        e(f"v_add_u32 v19, {QS0}, v19")
        for t in range(8):
            e(f"v_xor_b32 v20, {t}, v17\nv_lshl_add_u32 v{AW(t)}, v20, 5, v19")
        e(f"s_mul_i32 s{S_T0}, s{S_WAVE}, {48 * 128}\ns_add_u32 s{S_T0}, s{S_T0}, {QS0 + 16384}")
        e(f"v_lshlrev_b32 v19, 7, v2\nv_add_u32 v19, s{S_T0}, v19\nv_lshrrev_b32 v21, 1, v2")
        for s in range(2):
            e(f"v_or_b32 v20, {4 * s}, v1\nv_xor_b32 v20, v20, v21\nv_lshl_add_u32 v{AX(s)}, v20, 4, v19")
        e("v_lshlrev_b32 v19, 8, v2")
        for s in range(4):
            e(f"v_or_b32 v20, {4 * s}, v18\nv_xor_b32 v20, v20, v2\nv_lshl_add_u32 v{AK(s)}, v20, 4, v19")
        e(f"v_lshl_add_u32 v19, v1, 2, v3\nv_lshlrev_b32 v19, 8, v19\nv_lshl_add_u32 v19, v16, 3, v19\nv_add_u32 v19, {8192 + 65536}, v19")
        for t in range(8):
            e(f"v_xor_b32 v20, {t}, v17\nv_lshl_add_u32 v{AV(t)}, v20, 5, v19")
        e(f"v_mov_b32 v{V_LA}, {SYNC}\nv_mov_b32 v{V_P}, 0")
        e(f"s_lshl_b32 s{S_T0}, s{S_WAVE}, 8\ns_add_u32 s{S_T0}, s{S_T0}, {SYNC + 256}\nv_lshlrev_b32 v19, 2, v0\nv_add_u32 v{V_PA}, s{S_T0}, v19")
        e(f"v_lshrrev_b32 v19, 2, v0\nv_mul_u32_u24 v19, 160, v19\nv_lshl_add_u32 v{RW}, v16, 3, v19")
        e(f"v_add_u32 v{RW + 1}, 65536, v{RW}\nv_add_u32 v{RW + 2}, {65536 + 12 * KSTEP}, v{RW}")
        for r in range(16, 124, 2):
            e(f"v_mov_b64 v[{r}:{r + 1}], 0")
        e(f"v_mov_b64 v[{P_(2)}:{P_(2) + 1}], 0\nv_mov_b64 v[{P_(2) + 2}:{P_(2) + 3}], 0")
        for r in range(4):
            e(f"v_mov_b32 v{ONES + r}, 0x3f803f80")
        e(f"s_mov_b32 s{S_NEED}, 1\ns_mov_b32 s{S_MASK}, 0x40004000\ns_mov_b32 s{S_FLIP}, 0x10000")

    def qphase(self):
        e = self.e

        def rdw(t, s, hh):
            return ("ds", f"ds_read_b64_tr_b16 {a_(WF(t) + 2 * hh, 2)}, v{AW(t)} offset:{s * 8192 + hh * 1024}")

        def rdx(p, j):
            return ("ds", f"ds_read_b128 {a_(XF(p, j), 4)}, v{AX(p)} offset:{j * 2048}")

        def wf(*ts):
            r = set()
            for t in ts:
                r |= regs_of(a_(WF(t), 4))
            return r

        M, fill = [], {}
        for s in range(2):
            for t in range(8):
                for j in range(3):
                    M.append((v(O_(j, t), 4), a_(WF(t), 4), a_(XF(s, j), 4), v(O_(j, t), 4)))
        add = lambda r: f"v_add_u32 v{r}, s{S_T0}, v{r}"
        F = lambda k: fill.setdefault(k, [])
        for t in range(8):
            if t in (1, 3, 5):
                F(3 * t + 2).append(("wait", wf(t + 1, t + 2)))
            F(3 * t + 2).append(rdw(t, 1, 0))
            F(3 * t + 3).append(rdw(t, 1, 1))
        F(2).insert(0, ("wait", wf(1)))
        for j in range(3):
            F(3 * j + 4).append(rdx(1, j))
        F(23).insert(0, ("wait", wf(0, 1) | regs_of(a_(XF(1, 0), 12))))
        b = 24
        F(b + 1).append(f"s_add_u32 s{S_SLOT}, s{S_SLOT}, 1")
        F(b + 2).append(f"s_cmp_eq_u32 s{S_SLOT}, 3")
        F(b + 3).append(f"s_cselect_b32 s{S_T0}, {(-2 * QSLOT) & 0xffffffff}, s{S_T1}")
        F(b + 4).append(f"s_cselect_b32 s{S_SLOT}, 0, s{S_SLOT}")
        F(b + 4).extend([add(AW(0)), add(AW(1))])
        F(b + 5).extend([("wait0",), "s_barrier"])
        F(b + 6).extend([rdw(0, 0, 0), add(AX(0))])
        F(b + 7).extend([rdw(0, 0, 1), add(AW(2))])
        F(b + 8).extend([rdx(0, 0), rdw(1, 0, 0)])
        F(b + 9).extend([rdx(0, 1), rdw(1, 0, 1)])
        F(b + 10).extend([rdx(0, 2), add(AX(1))])
        F(b + 11).extend([rdw(2, 0, 0), add(AW(3))])
        F(b + 12).extend([rdw(2, 0, 1), add(AW(4))])
        F(b + 13).extend([rdw(3, 0, 0), add(AW(5))])
        F(b + 14).extend([rdw(3, 0, 1), add(AW(6))])
        F(b + 15).extend([rdw(4, 0, 0), add(AW(7))])
        F(b + 16).append(rdw(4, 0, 1))
        F(b + 17).append(rdw(5, 0, 0))
        F(b + 18).append(rdw(5, 0, 1))
        F(b + 19).append(f"s_sub_u32 s{S_CNT}, s{S_CNT}, 1")
        F(b + 20).extend([f"s_cmp_lg_u32 s{S_CNT}, 0", rdw(6, 0, 0)])
        F(b + 21).append(rdw(6, 0, 1))
        F(b + 22).append(("wait", wf(0) | regs_of(a_(XF(0, 0), 12))))
        F(b + 23).extend([rdw(7, 0, 0), rdw(7, 0, 1)])

        e(f"s_mov_b32 s{S_SLOT}, 0\ns_mov_b32 s{S_T1}, {QSLOT}\ns_mov_b32 s{S_CNT}, 10")
        e("s_barrier")
        first = [rdw(0, 0, 0), rdw(0, 0, 1), rdx(0, 0), rdw(1, 0, 0), rdx(0, 1), rdw(1, 0, 1), rdx(0, 2)]
        for t in range(2, 8):
            first += [rdw(t, 0, 0), rdw(t, 0, 1)]
        for x in first:
            self.ds(x[1])
        self.lwait(wf(0) | regs_of(a_(XF(0, 0), 12)))
        entry = [set(x) for x in self.lq]
        e(".p2align 3")
        e("L_q:")
        self.strict = True
        if self.o.get("q_nomfma"):
            for k in range(len(M)):
                M[k] = (v(S_(0, 0), 4), M[k][1], M[k][2], v(S_(0, 0), 4))
        self.stream(M, fill)
        self.strict = False
        assert [set(x) for x in self.lq] == entry, "loop-carried LDS queue differs"
        e("s_cbranch_scc1 L_q")
        self.lwait0()
        for s in range(4):
            for u in range(2):
                self.ds(f"ds_read_b128 {a_(KF(u, s), 4)}, v{AK(s)} offset:{u * 4096}")
        c = math.log2(math.e) / math.sqrt(128.0)
        e(f"s_mov_b32 s{S_RET}, {f2u(c):#x}\ns_mov_b32 s{S_RET + 1}, {f2u(c):#x}\ns_mov_b32 s{S_CNT}, 8")

        def prep(j):
            ops = []
            for r in range(O_(j, 0), O_(j, 0) + 32, 2):
                ops.append(f"v_pk_mul_f32 v[{r}:{r + 1}], v[{r}:{r + 1}], s[{S_RET}:{S_RET + 1}]")
            for s in range(4):
                ops += self.pack_ops(j, s)
            for r in range(O_(j, 0), O_(j, 0) + 32, 2):
                ops.append(f"v_mov_b64 v[{r}:{r + 1}], 0")
            for s in range(4):
                q = Q_(j, s)
                ops += [f"v_permlane16_swap_b32 v{q}, v{q + 2}", f"v_permlane16_swap_b32 v{q + 1}, v{q + 3}"]
            return ops

        def ref(j):
            ops = self.rowmax(j)
            ops += [f"v_sub_f32 v{NM(j) + r}, 0, v1" for r in range(4)]
            return ops

        def with_qk(j, ops):
            M = [(d, a, b, "0" if c == v(NM(j), 4) else c) for d, a, b, c in self.qk(j)]
            fill = {k: ops[2 * k:2 * k + 2] for k in range(7)}
            fill[7] = ops[14:]
            self.stream(M, fill)

        for x in prep(0) + ["s_nop 0"]:
            e(x)
        with_qk(0, prep(1) + ["s_nop 0"])
        with_qk(1, prep(2) + ["s_nop 0"])
        zero_v = [f"v_accvgpr_write_b32 a{VF(0) + r}, 0" for r in range(32)]
        with_qk(2, zero_v[:16] + ref(0) + [f"v_sub_f32 v{S_(0, 0) + k}, v{S_(0, 0) + k}, v1" for k in range(8)])
        for x in ref(1) + zero_v[16:] + ref(2):
            e(x)

    def rowmax(self, j):
        s0 = S_(j, 0)
        return [f"v_max3_f32 v1, v{s0}, v{s0 + 1}, v{s0 + 2}", f"v_max3_f32 v1, v1, v{s0 + 3}, v{s0 + 4}",
                f"v_max3_f32 v1, v1, v{s0 + 5}, v{s0 + 6}", f"v_max_f32 v1, v1, v{s0 + 7}",
                "v_mov_b32 v2, v1", "s_nop 1", "v_permlane16_swap_b32 v1, v2", "v_max_f32 v1, v1, v2",
                "v_mov_b32 v2, v1", "s_nop 1", "v_permlane32_swap_b32 v1, v2", "v_max_f32 v1, v1, v2",
                "v_add_f32 v1, 0x40e00000, v1"]

    def pack_ops(self, j, s):
        q = Q_(j, s)
        return [f"v_cvt_pk_bf16_f32 v{q + n}, v{O_(j, 2 * s) + 2 * n}, v{O_(j, 2 * s) + 2 * n + 1}" for n in range(4)]

    def qk(self, j):
        out = []
        for s in range(4):
            for u in range(2):
                c = v(NM(j), 4) if s == 0 else v(S_(j, u), 4)
                out.append((v(S_(j, u), 4), a_(KF(u, s), 4), v(Q_(j, s), 4), c))
        return out

    def pv(self, j):
        out = [(v(O_(j, t), 4), a_(VF(t), 4), v(P_(j), 4), v(O_(j, t), 4)) for t in range(8)]
        out.append((v(L_(j), 4), v(ONES, 4), v(P_(j), 4), v(L_(j), 4)))
        return out

    def site(self, target):
        k = len(self.sites)
        self.sites.append(target)
        return f"s_cbranch_vccnz L_stub{k}\nL_ret{k}:"

    def sm_ops(self, j):
        X = [f"v_exp_f32 v{E_ + k}, v{S_(j, 0) + k}" for k in range(8)]
        C = [f"v_cvt_pk_bf16_f32 v{P_(j) + k}, v{E_ + 2 * k}, v{E_ + 2 * k + 1}" for k in range(4)]
        p = P_(j)
        K = [f"v_or3_b32 v{V_ACC}, v{p}, v{p + 1}, v{p + 2}",
             f"v_bitop3_b32 v{V_ACC}, v{V_ACC}, v{p + 3}, s{S_MASK} bitop3:0xa8",
             f"v_cmp_ne_u32 vcc, 0, v{V_ACC}",
             self.site(f"L_rare{j}")]
        return X, C, K

    def tile(self, a):
        M = self.qk(1) + self.pv(2) + self.qk(2) + self.pv(0) + self.qk(0) + self.pv(1)
        X0, C0, K0 = self.sm_ops(0)
        X1, C1, K1 = self.sm_ops(1)
        X2, C2, K2 = self.sm_ops(2)

        def rv(t, hh):
            return ("ds", f"ds_read_b64_tr_b16 {a_(VF(t) + 2 * hh, 2)}, v{AV(t)} offset:{a * 16384 + hh * 4096}")

        def rk(k):
            u, s = k & 1, k >> 1
            return ("ds", f"ds_read_b128 {a_(KF(u, s), 4)}, v{AK(s)} offset:{((a + 1) & 3) * 16384 + u * 4096}")

        kf = lambda *ks: set().union(*[regs_of(a_(KF(k & 1, k >> 1), 4)) for k in ks])
        flip = lambda r: f"v_xor_b32 v{r}, s{S_FLIP}, v{r}"
        fill = {
            0: [X0[7]], 1: [C0[0], C0[1]], 2: [C0[2], C0[3]], 3: [K0[0], K0[1]],
            4: [K0[2], f"v_add_u32 v{V_P}, 1, v{V_P}"],
            5: [("wait0",), ("ds", f"ds_write_b32 v{V_PA}, v{V_P}")],
            6: [K0[3], f"v_cmp_gt_u32 vcc, s{S_NEED}, v{V_L}"], 7: [],
            8: [self.site("L_spin"), rv(0, 0)],
            9: [f"s_add_u32 s{S_NEED}, s{S_NEED}, 1", rv(0, 1), rv(1, 0)], 10: [rv(1, 1), rv(2, 0)], 11: [X1[0]],
            12: [rv(2, 1), rv(3, 0)], 13: [X1[1]], 14: [rv(3, 1), rv(4, 0)], 15: [X1[2]],
            16: [rv(4, 1), rv(5, 0)], 17: [X1[3]], 18: [rv(5, 1), C1[0]], 19: [rv(6, 0), C1[1]],
            20: [X1[4]], 21: [rv(6, 1), rv(7, 0)], 22: [X1[5]], 23: [rv(7, 1), rk(0)],
            24: [("wait", regs_of(a_(VF(0), 24))), X1[6]], 25: [rk(1), rk(2)], 26: [X1[7]],
            27: [rk(3), C1[2]], 28: [rk(4), C1[3]], 29: [rk(5), K1[0]],
            30: [("wait", regs_of(a_(VF(6), 8))), rk(6), K1[1]], 31: [rk(7), K1[2]], 32: [X2[0]],
            33: [K1[3], ("wait", kf(0, 1, 2, 3)), X2[1]],
            34: [X2[2]], 35: [X2[3]], 36: [X2[4]], 37: [("wait", kf(4, 5, 6, 7)), X2[5]], 38: [X2[6]], 39: [X2[7]],
            40: [C2[0], C2[1]], 41: [C2[2], C2[3]], 42: [K2[0], K2[1]],
            43: [("ds", f"ds_read_b32 v{V_L}, v{V_LA}"), K2[2]],
            44: [X0[0]], 45: [K2[3], X0[1]], 46: [X0[2]], 47: [X0[3]], 48: [X0[4]], 49: [X0[5]], 50: [X0[6]],
        }
        if self.o["eprog"]:
            fill[4] = [K0[2]]
            fill[5] = [("wait0",)]
            fill[40] = [("ds", f"ds_write_b32 v{V_PA}, v{V_P}"), C2[0]]
            fill[41] = [C2[1], C2[2]]
            fill[42] = [C2[3], K2[0]]
            fill[43] = [("ds", f"ds_read_b32 v{V_L}, v{V_LA}"), K2[1]]
            fill[44] = [K2[2], X0[0]]
            fill[45] = [X0[1]]
            fill[46] = [K2[3], X0[2]]
            fill[8].append(f"v_add_u32 v{V_P}, 1, v{V_P}")
        if a == 0:
            fill[5].append(flip(AV(0)))
            fill[6].append(flip(AV(1)))
            fill[7] += [flip(AV(2)), flip(AV(3))]
            fill[4 if self.o["eprog"] else 8].append(flip(AV(4)))
            fill[11].append(flip(AV(5)))
            fill[13].append(flip(AV(6)))
            fill[15].append(flip(AV(7)))
        if a == 1:
            fill[0].insert(0, f"s_cmp_gt_u32 s{S_CNT}, 6")
            fill[1].insert(0, f"s_cselect_b32 s{S_FLIP}, s{S_FLIP}, 0")
        if a == 3:
            fill[5].append(flip(AK(0)))
            fill[6].append(flip(AK(1)))
            fill[7] += [flip(AK(2)), flip(AK(3))]
            fill[31].insert(0, f"s_sub_u32 s{S_CNT}, s{S_CNT}, 1")
            fill[33] = fill[33][:1] + [f"s_cmp_eq_u32 s{S_CNT}, 0", "s_cbranch_scc1 L_att_tail"] + fill[33][1:]
        self.stream(M, fill)

    def attention(self):
        e, o = self.e, self.o
        assert not self.lq
        if o["eprog"]:
            e(f"v_mov_b32 v{V_P}, 1")
            self.ds(f"ds_write_b32 v{V_PA}, v{V_P}")
        self.ds(f"ds_read_b32 v{V_L}, v{V_LA}")
        for k in range(7):
            e(f"v_exp_f32 v{E_ + k}, v{S_(0, 0) + k}")
        self.stamp("att0", "c")
        entry = [set(x) for x in self.lq]
        e(".p2align 3")
        e("L_att:")
        self.strict = True
        for a in range(4):
            self.tile(a)
        self.strict = False
        assert [set(x) for x in self.lq] == entry
        e("s_branch L_att")
        e("L_att_tail:")
        self.stamp("att1", "c")
        e(f"v_mov_b32 v{V_P}, 33")
        self.lwait0()
        self.ds(f"ds_write_b32 v{V_PA}, v{V_P}")
        self.ds(f"ds_read_b128 {v(V_TAG, 4)}, v{V_LA}")
        X2, C2, K2 = self.sm_ops(2)
        fill = {k: [X2[k + 1]] for k in range(7)}
        fill[7] = [C2[0], C2[1]]
        fill[8] = [C2[2], C2[3], K2[0], K2[1], K2[2]]
        self.stream(self.pv(1), fill)
        e(f"s_mul_i32 s{S_OB}, s{S_B}, 9\ns_mul_i32 s{S_T1}, s{S_WAVE}, 3\ns_add_u32 s{S_OB}, s{S_OB}, s{S_T1}")
        e(f"s_lshl_b32 s{S_OB}, s{S_OB}, 5\ns_add_u32 s{S_T0}, s{S_OB}, s{S_H}\ns_lshl_b32 s{S_T0}, s{S_T0}, 12")
        e(K2[3])
        e("v_lshlrev_b32 v1, 4, v0")
        self.lwait0()
        e(f"v_readfirstlane_b32 s{S_FAST}, v{V_TAG + 3}\nv_readfirstlane_b32 s{S_TAG}, v{V_TAG + 1}\nv_readfirstlane_b32 s{S_TAG + 1}, v{V_TAG + 2}")

        def norm(j):
            ops = [f"v_rcp_f32 v2, v{L_(j)}", f"v_rcp_f32 v3, v{L_(j)}", "s_nop 0"]
            for s in range(4):
                for r in range(O_(j, 2 * s), O_(j, 2 * s) + 8, 2):
                    ops.append(f"v_pk_mul_f32 v[{r}:{r + 1}], v[{r}:{r + 1}], v[2:3]")
                ops += self.pack_ops(j, s)
            ops += [f"s_cmp_lg_u32 s{S_FAST}, 0", f"s_cbranch_scc1 L_st{j}f"]
            for pol in ("sc1", o.get("spol", "")):
                for s in range(4):
                    ops.append(f"buffer_store_dwordx4 {v(Q_(j, s), 4)}, v1, {srd_(SRD_WS)}, s{S_T0} offen offset:{s * 1024} {pol}")
                ops.append(f"s_branch L_st{j}e\nL_st{j}f:" if pol == "sc1" else f"L_st{j}e:")
            ops.append(f"s_add_u32 s{S_T0}, s{S_T0}, {32 * 4096}")
            return ops

        n0 = norm(0)
        fill = {k: n0[2 * k:2 * k + 2] for k in range(8)}
        fill[8] = n0[16:]
        self.stream(self.pv(2), fill)
        for j in (1, 2):
            for x in norm(j):
                e(x)
        e(f"v_mov_b32 v{V_TAG}, s{S_TAG}\nv_mov_b32 v{V_TAG + 1}, s{S_TAG + 1}\nv_mov_b32 v{V_TAG + 2}, 0")
        self.stamp("stored", "c")

    def rare(self):
        e = self.e
        for k, target in enumerate(self.sites):
            e(f"L_stub{k}:\ns_call_b64 s[{S_RET}:{S_RET + 1}], {target}\ns_branch L_ret{k}")
        e("L_spin:")
        e(f"s_mov_b32 s{S_SPIN}, 0")
        e("L_spin1:")
        e(f"ds_read_b32 v{V_L}, v{V_LA}\ns_add_u32 s{S_SPIN}, s{S_SPIN}, 1\ns_waitcnt lgkmcnt(0)")
        e(f"v_cmp_gt_u32 vcc, s{S_NEED}, v{V_L}\ns_cmp_ge_u32 s{S_SPIN}, {SPIN_MAX}\ns_cbranch_scc1 L_spin2")
        if self.o.get("ssleep"):
            e(f"s_cbranch_vccz L_spin2\ns_sleep {self.o['ssleep']}\ns_branch L_spin1")
        else:
            e("s_cbranch_vccnz L_spin1")
        e("L_spin2:")
        e(f"s_setpc_b64 s[{S_RET}:{S_RET + 1}]")
        for j in range(3):
            s0 = S_(j, 0)
            e(f"L_rare{j}:")
            e("s_nop 7")
            for x in self.rowmax(j):
                e(x)
            e("v_max_f32 v1, 0, v1")
            e("v_exp_f32 v2, -v1\nv_exp_f32 v3, -v1\ns_nop 0")
            for r in list(range(O_(j, 0), O_(j, 0) + 32, 2)) + [L_(j), L_(j) + 2]:
                e(f"v_pk_mul_f32 v[{r}:{r + 1}], v[{r}:{r + 1}], v[2:3]")
            for r in range(4):
                e(f"v_sub_f32 v{NM(j) + r}, v{NM(j) + r}, v1")
            for k in range(8):
                e(f"v_sub_f32 v{s0 + k}, v{s0 + k}, v1")
            for k in range(8):
                e(f"v_exp_f32 v{s0 + k}, v{s0 + k}")
            e("s_nop 0")
            for k in range(4):
                e(f"v_cvt_pk_bf16_f32 v{P_(j) + k}, v{s0 + 2 * k}, v{s0 + 2 * k + 1}")
            e("s_nop 1")
            e(f"s_setpc_b64 s[{S_RET}:{S_RET + 1}]")

    def poll(self, name, areg, soff, pol="sc1"):
        e = self.e
        e(f"s_mov_b32 s{S_SPIN}, 0")
        e(f"L_{name}:")
        e(f"buffer_load_dwordx2 v[2:3], v{areg}, {srd_(SRD_WS)}, s{soff} offen {pol}")
        e(f"s_add_u32 s{S_SPIN}, s{S_SPIN}, 1\ns_waitcnt vmcnt(0)\nv_cmp_ne_u64 vcc, s[{S_TAG}:{S_TAG + 1}], v[2:3]")
        e(f"s_cmp_ge_u32 s{S_SPIN}, 0x40000\ns_cbranch_scc1 L_{name}_end")
        e(f"s_cbranch_vccz L_{name}_end\ns_sleep {self.o.get('psleep', 1)}\ns_branch L_{name}")
        e(f"L_{name}_end:")

    def signal(self, soff, areg=V_TAG + 2, mask=1, pol="sc1"):
        return [f"s_mov_b64 exec, {mask}",
                f"buffer_store_dwordx2 {v(V_TAG, 2)}, v{areg}, {srd_(SRD_WS)}, s{soff} offen {pol}",
                "s_mov_b64 exec, -1"]

    def projection(self):
        e, o = self.e, self.o
        ACC = lambda c, j: 16 + 12 * c + 4 * j
        WO = lambda x: 160 + 4 * x
        OA = 11
        D = o["odepth"]

        def OF(n, j):
            if n < 4:
                return v(Q_(j, n), 4)
            return a_(12 * (n - 4) + 4 * j, 4) if n < 25 else v(76 + 12 * (n - 25) + 4 * j, 4)

        def rw(n, c, x, hh):
            r, off = wbase(n)
            return ("ds", f"ds_read_b64_tr_b16 {v(WO(x) + 2 * hh, 2)}, v{RW + r} offset:{off + hh * 2560 + c * 32}")

        def ldo(n, j):
            r = []
            if n % 4 == 0 and j == 0:
                r += [f"s_add_u32 s{S_T1}, s{S_I}, {n >> 2}", f"s_and_b32 s{S_T1}, s{S_T1}, 7",
                      f"s_lshl_b32 s{S_T1}, s{S_T1}, 12", f"s_add_u32 s{S_XO}, s{S_OB}, s{S_T1}"]
            r.append(f"buffer_load_dwordx4 {OF(n, j)}, v{OA + j}, {srd_(SRD_WS)}, s{S_XO} offen offset:{(n & 3) * 1024} {o['opol']}")
            return r

        wreg = lambda *xs: set().union(*[regs_of(v(WO(x), 4)) for x in xs])

        def kstep(n, cols, last):
            M, fill = [], {}
            for x, c in enumerate(cols):
                for j in range(3):
                    M.append((v(ACC(c, j), 4), v(WO(x), 4), OF(n, j), "0" if n == 0 else v(ACC(c, j), 4)))
                if not last:
                    fill.setdefault(3 * x + 2, []).append(rw(n + 1, c, x, 0))
                    fill.setdefault(min(3 * x + 3, 3 * len(cols) - 1), []).append(rw(n + 1, c, x, 1))
            for x in range(len(cols)):
                g = 3 * x - 2 if x else 3 * len(cols) - 2
                fill.setdefault(g, []).insert(0, ("wait", wreg(x)))
            return M, fill

        ALL = (0, 1, 2, 3, 4)
        for x in ALL:
            for hh in range(2):
                self.ds(rw(0, x, x, hh)[1])
        e(f"s_lshl3_add_u32 s{S_OB}, s{S_KG}, s{S_OB}\ns_lshl_b32 s{S_OB}, s{S_OB}, 12")
        e(f"v_add_u32 v{OA + 1}, {32 * 4096}, v1\nv_add_u32 v{OA + 2}, {64 * 4096}, v1\nv_mov_b32 v{OA}, v1")
        e(f"v_mov_b32 v{V_P}, 34\nv_and_b32 v14, 7, v0\nv_lshlrev_b32 v14, 9, v14")
        e(f"s_lshl2_add_u32 s{S_T2}, s{S_BH}, s{S_WAVE}\ns_lshl_b32 s{S_T2}, s{S_T2}, 7\ns_add_u32 s{S_T2}, s{S_T2}, {FLAG_A}")
        self.lwait(wreg(0))
        fa = o["flaga_at"]
        for n in range(4):
            M, fill = kstep(n, ALL, n == 3)
            if n == 0:
                fill.setdefault(13, []).append(("ds", f"ds_write_b32 v{V_PA}, v{V_P}"))
            if n == fa:
                fill.setdefault(14, []).extend(
                    ["s_waitcnt vmcnt(0)", f"s_cmp_lg_u32 s{S_FAST}, 0", "s_cbranch_scc1 L_fa_f"] + self.signal(S_T2)
                    + ["s_branch L_fa_e\nL_fa_f:"] + self.signal(S_T2, pol="") + ["L_fa_e:"])
            self.stream(M, fill)
        self.stamp("own_done", "c")
        P1 = (0, 1, 4)
        for x, c in enumerate(P1):
            for hh in range(2):
                self.ds(rw(4, c, x, hh)[1])
        e(f"s_lshl_b32 s{S_T1}, s{S_I}, 9\ns_sub_u32 s{S_T2}, s{S_T2}, s{S_T1}")
        if o.get("pdelay"):
            e(f"s_mov_b32 s{S_NEED}, {o['pdelay']}\ns_call_b64 s[{S_RET}:{S_RET + 1}], L_spin")
        self.poll("polla", 14, S_T2, o["fpol"])
        if o["opol"] != "sc1":
            e(f"s_cmp_lg_u32 s{S_FAST}, 0\ns_cbranch_scc1 L_acq\nbuffer_inv sc1\ns_waitcnt vmcnt(0)\nL_acq:")
        self.stamp("poll_a", "c")
        for n in range(4, 4 + D):
            for j in range(3):
                for x in ldo(n, j):
                    e(x)
        e(f"s_lshl3_add_u32 s{S_PB}, s{S_B}, s{S_I}")
        e(f"s_lshl_b32 s{S_T2}, s{S_PB}, 6\ns_add_u32 s{S_T2}, s{S_T2}, s{S_WAVE}\ns_lshl_b32 s{S_T2}, s{S_T2}, 7")
        e(f"s_add_u32 s{S_N}, s{S_T2}, {FLAG_B}")
        e(f"s_mul_i32 s{S_PB}, s{S_PB}, {16 * 12288}\ns_lshl_b32 s{S_T0}, s{S_WAVE}, 12\ns_add_u32 s{S_PB}, s{S_PB}, s{S_T0}\ns_add_u32 s{S_PB}, s{S_PB}, {PART}")
        e(f"s_mul_i32 s{S_T0}, s{S_KG}, 12288\ns_add_u32 s{S_C}, s{S_PB}, s{S_T0}")
        e(f"s_mul_i32 s{S_T0}, s{S_KG}, {4 * 12288}\ns_add_u32 s{S_PB}, s{S_PB}, s{S_T0}")
        e("v_and_b32 v14, 3, v0\nv_lshlrev_b32 v14, 9, v14\nv_lshlrev_b32 v6, 2, v14")
        e("v_and_b32 v15, 15, v0\nv_mul_u32_u24 v15, 1280, v15\nv_lshrrev_b32 v7, 4, v0\nv_lshl_add_u32 v15, v7, 3, v15")
        self.lwait0()
        e(f"s_waitcnt vmcnt({3 * D - 3})")
        self.stamp("o_first", "c")
        for n in range(4, 32):
            M, fill = kstep(n, P1, n == 31)
            if n % 4 == 3 and n < 31 and n + 5 >= NRES:
                fill.setdefault(0, []).extend([f"s_mov_b32 s{S_NEED}, {33 + min(31, n + 5) - NRES}", ("ds", f"ds_read_b32 v{V_L}, v{V_LA}")])
                fill.setdefault(4, []).extend([("wait", regs_of(f"v{V_L}")), f"v_cmp_gt_u32 vcc, s{S_NEED}, v{V_L}"])
                fill.setdefault(7, []).insert(0, self.site("L_spin"))
            if n + D < 32:
                for j, g in enumerate((0, 4, 7)):
                    fill.setdefault(g, []).extend(ldo(n + D, j))
            if n < 31:
                fill.setdefault(8, []).append(f"s_waitcnt vmcnt({3 * (min(D, 31 - n) - 1)})")
            if n == 31:
                for x in (3, 4):
                    fill.setdefault(0 if x == 3 else 3, []).extend([rw(x + 1, 2, x, 0), rw(x + 1, 2, x, 1)])
            self.stream(M, fill)
        self.stamp("pass1", "c")

        def send(c, j):
            if c == 4:
                return [f"s_add_u32 s{S_T0}, s{S_C}, {j * 4 * 12288}",
                        f"buffer_store_dwordx4 {v(ACC(4, j), 4)}, v1, {srd_(SRD_WS)}, s{S_T0} offen offset:3072 sc1"]
            r = []
            if j == 0:
                r += [f"s_add_u32 s{S_T0}, s{S_KG}, {c + 1}", f"s_and_b32 s{S_T0}, s{S_T0}, 3",
                      f"s_mul_i32 s{S_T0}, s{S_T0}, {4 * 12288}", f"s_add_u32 s{S_T0}, s{S_T0}, s{S_C}"]
            r.append(f"buffer_store_dwordx4 {v(ACC(c, j), 4)}, v1, {srd_(SRD_WS)}, s{S_T0} offen offset:{j * 1024} sc1")
            return r

        seq = [(2, n) for n in range(4, 32)] + [(3, n) for n in range(4, 32)]
        buf = lambda k: (k + 3) % 5
        M, fill = [], {}
        for k, (c, n) in enumerate(seq):
            for j in range(3):
                M.append((v(ACC(c, j), 4), v(WO(buf(k)), 4), OF(n, j), v(ACC(c, j), 4)))
            for kk in ([2, 3, 4] if k == 0 else [k + 4]):
                if kk < len(seq):
                    c2, n2 = seq[kk]
                    g = 3 * k + (kk - 2 if k == 0 else 0)
                    fill.setdefault(g, []).append(rw(n2, c2, buf(kk), 0))
                    fill.setdefault(g if k == 0 else g + 1, []).append(rw(n2, c2, buf(kk), 1))
            if k + 1 < len(seq):
                fill.setdefault(3 * k + 2, []).insert(0, ("wait", wreg(buf(k + 1))))
        sends = [(c, j) for c in P1 for j in range(3)]
        for k, (c, j) in enumerate(sends):
            fill.setdefault(3 * (k + 2) + 2, []).extend(send(c, j))
        for j in range(3):
            fill.setdefault(3 * (28 + 2 + j) + 2, []).extend(send(2, j))
        g = 3 * min(55, 28 + o["flagb_at"]) + 2
        fill.setdefault(g, []).extend([f"s_lshl_b32 s{S_T1}, s{S_KG}, 9", f"s_add_u32 s{S_T1}, s{S_T1}, s{S_N}", "s_waitcnt vmcnt(0)"]
                                      + self.signal(S_T1, 6, 15))
        self.stream(M, fill)
        self.stamp("mfma_done", "c")
        e(f"s_lshl_b32 s{S_T1}, s{S_KG}, 11\ns_add_u32 s{S_N}, s{S_N}, s{S_T1}")
        self.poll("pollb", 14, S_N)
        self.stamp("poll_b", "c")
        RB = lambda m, sl: 76 + 16 * m + 4 * sl
        for m in range(4):
            e(f"s_add_u32 s{S_T0}, s{S_KG}, {m}\ns_and_b32 s{S_T0}, s{S_T0}, 3\ns_mul_i32 s{S_T0}, s{S_T0}, 12288\ns_add_u32 s{S_T0}, s{S_T0}, s{S_PB}")
            for sl in range(4):
                if m or sl == 3:
                    e(f"buffer_load_dwordx4 {v(RB(m, sl), 4)}, v1, {srd_(SRD_WS)}, s{S_T0} offen offset:{sl * 1024} sc1")
        e(f"s_mul_i32 s{S_T0}, s{S_B}, 3\ns_add_u32 s{S_T0}, s{S_T0}, s{S_WAVE}\ns_mul_i32 s{S_T0}, s{S_T0}, {48 * 1280}")
        e(f"s_mul_i32 s{S_T1}, s{S_I}, 160\ns_add_u32 s{S_T0}, s{S_T0}, s{S_T1}")
        e(f"s_mul_i32 s{S_T1}, s{S_KG}, {16 * 1280}\ns_add_u32 s{S_T1}, s{S_T1}, s{S_T0}\ns_add_u32 s{S_T1}, s{S_T1}, 128")
        e(f"s_cmp_eq_u32 s{S_KG}, 3\ns_cselect_b32 s{S_T1}, 0x7000000, s{S_T1}")
        e(f"s_lshl_b32 s{S_T2}, s{S_KG}, 5\ns_add_u32 s{S_T0}, s{S_T0}, s{S_T2}")
        e("s_waitcnt vmcnt(0)")
        self.stamp("rb", "c")
        for sl in range(4):
            a0 = ACC(3, sl) if sl < 3 else RB(0, 3)
            for r in (0, 2):
                e(f"v_pk_add_f32 {v(a0 + r, 2)}, {v(a0 + r, 2)}, {v(RB(1, sl) + r, 2)}")
                e(f"v_pk_add_f32 {v(RB(2, sl) + r, 2)}, {v(RB(2, sl) + r, 2)}, {v(RB(3, sl) + r, 2)}")
            for r in (0, 2):
                e(f"v_pk_add_f32 {v(a0 + r, 2)}, {v(a0 + r, 2)}, {v(RB(2, sl) + r, 2)}")
            e(f"v_cvt_pk_bf16_f32 v{RB(1, sl)}, v{a0}, v{a0 + 1}\nv_cvt_pk_bf16_f32 v{RB(1, sl) + 1}, v{a0 + 2}, v{a0 + 3}")
            e(f"buffer_store_dwordx2 {v(RB(1, sl), 2)}, v15, {srd_(SRD_OUT)}, s{S_T0 if sl < 3 else S_T1} offen")
            if sl < 2:
                e(f"s_add_u32 s{S_T0}, s{S_T0}, {16 * 1280}")
        if o["stamps"]:
            e("s_waitcnt vmcnt(0)")
            self.stamp("end", "c")
            e(f"s_cmp_lg_u32 s{S_WAVE}, {o.get('swave', 0)}\ns_cbranch_scc1 L_end")
            if o.get("dly"):
                a, b, k = o["dly"].split(",")
                reg = {x[0]: x[1] for x in self.stamps if x[2] == "c"}
                reg["start"] = 94
                e("s_waitcnt lgkmcnt(0)")
                e(f"s_sub_u32 s{S_T0}, s{reg[b]}, s{reg[a]}\ns_mul_i32 s{S_T0}, s{S_T0}, {k}\ns_min_u32 s{S_T0}, s{S_T0}, 50000")
                e("L_dly:")
                e(f"s_memrealtime s[{S_RET}:{S_RET + 1}]\ns_waitcnt lgkmcnt(0)")
                e(f"s_sub_u32 s{S_T1}, s{S_RET}, s{reg['end']}\ns_cmp_lt_u32 s{S_T1}, s{S_T0}\ns_cbranch_scc1 L_dly")
                e("s_branch L_end")
            self.stamp_store("c")
        e("L_end:\ns_endpgm")

    def build(self):
        self.sites = []
        self.prologue()
        self.loader()
        self.lq = []
        self.compute_setup()
        self.qphase()
        self.attention()
        self.projection()
        self.rare()
        self.e("L_code_end:")
        self.expand_stamps()
        bad = check(self.L)
        assert bad == 0, f"{bad} hazards"
        hdr = open("cdna_kernels/" + NAME + ".s.ref").read().split("; Override launch")[0]
        txt = hdr
        txt += "; @launch grid=(256,1,1) block=(256,1,1) lds=163840\n"
        if self.stamps:
            txt += "; stamps: " + " ".join(x[0] for x in self.stamps) + "\n"
        txt += f""".amdgcn_target "amdgcn-amd-amdhsa--gfx950"
.text
.globl {NAME}_kernel
.p2align 8
.type {NAME}_kernel,@function
{NAME}_kernel:
"""
        for ln in self.L:
            txt += (ln if ln.endswith(":") else "    " + ln) + "\n"
        txt += f"""
.section .rodata,"a"
.p2align 6
.amdhsa_kernel {NAME}_kernel
  .amdhsa_next_free_vgpr 512
  .amdhsa_next_free_sgpr 102
  .amdhsa_accum_offset 256
  .amdhsa_group_segment_fixed_size 0
  .amdhsa_kernarg_size 64
  .amdhsa_user_sgpr_count 2
  .amdhsa_user_sgpr_kernarg_segment_ptr 1
  .amdhsa_system_sgpr_workgroup_id_x 1
  .amdhsa_float_denorm_mode_32 3
.end_amdhsa_kernel
"""
        return txt


def main():
    out = sys.argv[1]
    kw = {}
    for arg in sys.argv[2:]:
        k, val = arg.split("=", 1)
        if val in ("True", "False"):
            val = val == "True"
        elif val.lstrip("-").isdigit() and k not in ("mapping",):
            val = int(val)
        kw[k] = val
    g = Gen(**kw)
    txt = g.build()
    open(out, "w").write(txt)
    print(out, "lines", len(g.L), "stamps", [x[0] for x in g.stamps])


if __name__ == "__main__":
    main()
```

```python
import math
import struct
import sys

from hazard import check, regs_of

NAME = "standalone__mha_block_cached__near_ridge"
STAMP_OFF = 0x8000000
LANE_OFF = 0x4000000
FLAG_A = 0x1000000
FLAG_B = 0x1100000
PART = 0x1400000
SPIN_MAX = 0x100000

DEFAULTS = dict(
    stamps=False,
    kvpol="nt",
    qpol="",
    wpol="",
    rot=3,
    pf_code=True,
    strided=True,
    abc="5,4,8",
    fcopy=True,
    pdelay=0,
    ssleep=2,
    wlag=3,
    w0=7,
    warmr=True,
    eprog=True,
    fast=False,
    odepth=5,
    flaga_at=3,
    passes=3,
    lag="",
    refresh="7,6,4",
    deep=4,
    map=2,
    ord=False,
    nopk=True,
    inl0=True,
    csleep=2,
    opol="sc1",
    ftouch=True,
    fpol="sc1",
    kvq=7,
)

def f2u(x):
    return struct.unpack("<I", struct.pack("<f", x))[0]


def v(a, n=1):
    return f"v{a}" if n == 1 else f"v[{a}:{a + n - 1}]"


def a_(a, n=1):
    return f"a{a}" if n == 1 else f"a[{a}:{a + n - 1}]"


def srd_(d):
    return f"s[{d}:{d + 3}]"


S_WAVE = 3
SRD_K, SRD_V, SRD_X, SRD_WQ, SRD_WO, SRD_DBG, SRD_WS, SRD_OUT = 20, 24, 28, 32, 36, 40, 44, 48
S_H, S_B, S_BH = 52, 53, 54
S_T0, S_T1, S_T2 = 55, 56, 57
S_RET = 58
S_CNT, S_SLOT, S_NEED, S_MASK = 60, 61, 62, 63
S_J, S_KG, S_I, S_SPIN = 64, 65, 66, 67
S_N, S_MINP, S_PUB, S_FULL = 68, 69, 70, 71
S_C, S_XO, S_WO_, S_REQ, S_OB, S_PB = 72, 73, 74, 75, 76, 77
S_STAMP = 4
SRD_CODE = 96
S_TAG = 100
S_ORD = 19
S_FLIP = 68
S_LAG = 70
S_FRC = 71
S_ROT = 62

SYNC = 163840 - 1024
QSLOT = 34816
QS0 = SYNC - 3 * QSLOT
QEND = SYNC
KSTEP = 5120

O_ = lambda j, t: 16 + 32 * j + 4 * t
L_ = lambda j: 112 + 4 * j
NM = lambda j: 124 + 4 * j
S_ = lambda j, u: 136 + 8 * j + 4 * u
E_ = 160
P_ = lambda j: 168 + 4 * j
Q_ = lambda j, s: 180 + 16 * j + 4 * s
AK = lambda s: 228 + s
AV = lambda t: 232 + t
AW = lambda t: 240 + t
AX = lambda s: 248 + s
V_ACC = 250
ONES = 252
V_TAG = 240
V_LA, V_L, V_PA, V_P = 4, 5, 6, 7
RW = 8
KF = lambda u, s: 16 * u + 4 * s
VF = lambda t: 32 + 4 * t
WF = lambda t: 4 * t
XF = lambda p, j: 32 + 12 * p + 4 * j


NRES = 19


def waddr(n):
    if n < 6:
        return 65536 + (13 + n) * KSTEP
    if n < NRES:
        return 65536 + (n - 6) * KSTEP
    return (n - NRES) * KSTEP if n < 31 else waddr(0)


def wbase(n):
    a = waddr(n)
    if a < 65536:
        return 0, a
    if a < 65536 + 12 * KSTEP:
        return 1, a - 65536
    return 2, a - 65536 - 12 * KSTEP


class Gen:
    def __init__(self, **kw):
        self.o = dict(DEFAULTS)
        self.o.update(kw)
        self.L = []
        self.lq = []
        self.vq = []
        self.stamps = []
        self.strict = False

    def e(self, s):
        for ln in s.split("\n"):
            ln = ln.strip()
            if ln:
                self.L.append(ln)

    def ds(self, text):
        self.e(text)
        dst = text.split(None, 1)[1].split(",")[0]
        self.lq.append(regs_of(dst) if "read" in text.split()[0] else set())

    def lwait(self, regs):
        idx = -1
        for i, d in enumerate(self.lq):
            if d & regs:
                idx = i
        if idx < 0:
            return False
        n = min(len(self.lq) - 1 - idx, 15)
        self.e(f"s_waitcnt lgkmcnt({n})")
        self.lq = self.lq[len(self.lq) - n:] if n else []
        return True

    def lwait0(self):
        self.e("s_waitcnt lgkmcnt(0)")
        self.lq = []

    def vwait(self, tag):
        if tag not in self.vq:
            return
        idx = max(i for i, t in enumerate(self.vq) if t == tag)
        n = min(len(self.vq) - 1 - idx, 63)
        self.e(f"s_waitcnt vmcnt({n})")
        self.vq = self.vq[len(self.vq) - n:] if n else []

    def mfma(self, d, a, b, c):
        w = self.lwait(regs_of(a) | regs_of(b))
        assert not (w and self.strict), f"unplanned wait before mfma {d} {a} {b}"
        self.e(f"v_mfma_f32_16x16x32_bf16 {d}, {a}, {b}, {c}")

    def stream(self, M, fill):
        for k, m in enumerate(M):
            self.mfma(*m)
            for x in fill.get(k, []):
                if isinstance(x, str):
                    self.e(x)
                elif x[0] == "ds":
                    self.ds(x[1])
                elif x[0] == "wait":
                    self.lwait(x[1])
                else:
                    self.lwait0()

    def stamp(self, name, role):
        only = self.o.get("only")
        if self.o["stamps"] and (not only or name in ("start", "end") or name in only.split(",")):
            names = [name]
            if self.o.get("both") and name in self.o["both"].split(","):
                names.append(name + "_c")
            for nm in names:
                n = len([1 for x in self.stamps if x[2] == role])
                k = 78 + 2 * n if n < 8 else S_STAMP + 2 * (n - 8)
                op = "s_memtime" if (self.o.get("clk") or nm.endswith("_c")) else "s_memrealtime"
                self.e(f"{op} s[{k}:{k + 1}]")
                self.stamps.append((nm, k, role))

    def stamp_store(self, role):
        if self.o["stamps"]:
            self.e(f"@STAMPS {role}")

    def expand_stamps(self):
        out = []
        n = len(self.stamps)
        for ln in self.L:
            if ln.startswith("@STAMPS"):
                role = ln.split()[1]
                out.append("s_waitcnt lgkmcnt(0)")
                out += [f"s_mul_i32 s{S_T0}, s2, {n * 8}", f"s_add_u32 s{S_T0}, s{S_T0}, {STAMP_OFF}", "v_mov_b32 v3, 0"]
                for k, (_, r, ro) in enumerate(self.stamps):
                    if ro == role:
                        out += [f"v_mov_b32 v4, s{r}", f"v_mov_b32 v5, s{r + 1}",
                                f"buffer_store_dwordx2 v[4:5], v3, {srd_(SRD_WS)}, s{S_T0} offen offset:{8 * k}"]
            else:
                out.append(ln)
        self.L = out

    def srd(self, d, lo, off, size):
        if off:
            self.e(f"s_add_u32 s{d}, s{lo}, {off}\ns_addc_u32 s{d + 1}, s{lo + 1}, 0")
        else:
            self.e(f"s_mov_b32 s{d}, s{lo}\ns_mov_b32 s{d + 1}, s{lo + 1}")
        if size is not None:
            self.e(f"s_mov_b32 s{d + 2}, {size}")
        self.e(f"s_mov_b32 s{d + 3}, 0x20000")

    def code_srd(self):
        e = self.e
        n = getattr(self, "npc", 0)
        self.npc = n + 1
        e(f"s_getpc_b64 s[{SRD_CODE}:{SRD_CODE + 1}]\nL_pc{n}:")
        e(f"s_sub_u32 s{SRD_CODE}, s{SRD_CODE}, L_pc{n}-{NAME}_kernel\ns_subb_u32 s{SRD_CODE + 1}, s{SRD_CODE + 1}, 0")
        e(f"s_mov_b32 s{SRD_CODE + 2}, L_code_end-{NAME}_kernel\ns_mov_b32 s{SRD_CODE + 3}, 0x20000")

    def prologue(self):
        e = self.e
        e("s_cmp_ge_u32 s2, 256\ns_cbranch_scc1 L_end")
        e("s_load_dwordx8 s[4:11], s[0:1], 0")
        e("s_load_dwordx8 s[12:19], s[0:1], 32")
        self.stamp("start", "l")
        if self.o.get("dly"):
            e("s_memrealtime s[94:95]")
        e("v_lshrrev_b32 v1, 6, v0")
        e("v_and_b32 v0, 63, v0")
        e(f"v_readfirstlane_b32 s{S_WAVE}, v1")
        e(f"s_lshr_b32 s{S_J}, s2, 3")
        if self.o["map"] == 1:
            e(f"s_and_b32 s{S_KG}, s2, 3\ns_bfe_u32 s{S_I}, s2, 0x30003")
            e(f"s_and_b32 s{S_B}, s2, 4\ns_lshr_b32 s{S_T2}, s2, 6\ns_add_u32 s{S_B}, s{S_B}, s{S_T2}")
        else:
            e(f"s_bfe_u32 s{S_KG}, s2, 0x20001\ns_and_b32 s{S_I}, s2, 1\ns_and_b32 s{S_T2}, s{S_J}, 3")
            e(f"s_lshl2_add_u32 s{S_I}, s{S_I}, s{S_T2}\ns_lshr_b32 s{S_B}, s2, 5\ns_mov_b32 s{S_T2}, s{S_B}")
        e(f"s_lshl3_add_u32 s{S_H}, s{S_KG}, s{S_I}")
        e(f"s_cmp_lg_u32 s{S_WAVE}, 3\ns_cbranch_scc1 L_compute")

    def order_setup(self):
        e = self.e
        tabs = []
        for i in range(8):
            if self.o["map"] == 1 or not self.o["ord"]:
                od = [(i + n) & 7 for n in range(8)]
            else:
                od = [i] + [h for h in [(2 * (i & 3) + 1 + n) & 7 for n in range(8)] if h != i]
            tabs.append(sum(h << (4 * n) for n, h in enumerate(od)))
        e(f"s_mov_b32 s{S_ORD}, {tabs[0]:#x}")
        for i in range(1, 8):
            e(f"s_cmp_eq_u32 s{S_I}, {i}\ns_cselect_b32 s{S_ORD}, {tabs[i]:#x}, s{S_ORD}")

    def nmix(self):
        w1 = max(self.o["w0"] + 6, 4 * self.o["deep"] + 3)
        return min(self.o.get("nmix", NRES), 6 + 31 - w1)

    def loader(self):
        e, o = self.e, self.o
        nq, nkv = o.get("q_noload"), o.get("kv_noload")
        WQA, XA, KA, VA, DA = 20, 24, 28, 32, 36
        e("v_lshrrev_b32 v1, 4, v0\nv_and_b32 v2, 15, v0\nv_lshrrev_b32 v3, 3, v0\nv_and_b32 v16, 7, v0")
        for b in range(0, 4, 2):
            e(f"v_or_b32 v17, {(b >> 1) << 2}, v1\nv_lshlrev_b32 v17, 1, v17\nv_xor_b32 v17, v17, v2\nv_lshlrev_b32 v17, 4, v17")
            e("v_lshl_add_u32 v17, v1, 13, v17")
            for bb in (b, b + 1):
                e(f"v_add_u32 v{WQA + bb}, {bb * 4 * 8192 - bb * 1024}, v17")
        e("v_mul_u32_u24 v18, 1280, v3")
        for b in range(2):
            e(f"v_or_b32 v17, {4 * b}, v1\nv_xor_b32 v17, v17, v16\nv_lshl_add_u32 v17, v17, 4, v18")
            for bb in (b, b + 2):
                e(f"v_add_u32 v{XA + bb}, {bb * 8 * 1280 - bb * 1024}, v17")
        if o["rot"] == 2:
            e(f"s_add_u32 s{S_C}, s{S_I}, s{S_T2}\ns_and_b32 s{S_C}, s{S_C}, 1\ns_mul_i32 s{S_C}, s{S_C}, 5")
        elif o["rot"] == 4:
            e(f"s_add_u32 s{S_C}, s{S_I}, s{S_T2}\ns_and_b32 s{S_C}, s{S_C}, 3\ns_mul_i32 s{S_C}, s{S_C}, 5")
            e(f"s_add_u32 s{S_C}, s{S_C}, 1\ns_lshr_b32 s{S_C}, s{S_C}, 1")
        elif o["rot"] == 3:
            e(f"s_add_u32 s{S_C}, s{S_I}, s{S_T2}\ns_mul_i32 s{S_T0}, s{S_C}, 0x5556\ns_lshr_b32 s{S_T0}, s{S_T0}, 16\ns_mul_i32 s{S_T0}, s{S_T0}, 3")
            e(f"s_sub_u32 s{S_C}, s{S_C}, s{S_T0}\ns_mul_i32 s{S_C}, s{S_C}, 7\ns_lshr_b32 s{S_C}, s{S_C}, 1")
        else:
            e(f"s_mov_b32 s{S_C}, 0")
        e(f"s_mov_b32 s{S_SLOT}, {QS0}\ns_mul_i32 s{S_T1}, s{S_B}, 184320\ns_lshl_b32 s{S_T2}, s{S_H}, 8")
        e("s_waitcnt lgkmcnt(0)")
        self.srd(SRD_WQ, 10, f"s{S_T2}", None)
        e(f"s_sub_u32 s{SRD_WQ + 2}, {0 if nq else 5242880}, {0 if nq else 's' + str(S_T2)}")
        self.srd(SRD_X, 4, f"s{S_T1}", 0 if nq else 184320)
        if o["inl0"]:
            self.stamp("go", "l")
            e(f"s_getpc_b64 s[{S_RET}:{S_RET + 1}]\nL_pcq:")
            e(f"s_add_u32 s{S_RET}, s{S_RET}, L_ldq_go-L_pcq\ns_addc_u32 s{S_RET + 1}, s{S_RET + 1}, 0")
        else:
            e("s_branch L_ldq_go")

        e("L_qstep:")
        e(f"s_lshl_b32 s{S_WO_}, s{S_C}, 19\ns_lshl_b32 s{S_XO}, s{S_C}, 7")
        for a in range(5):
            if a < 4:
                e(f"s_add_u32 m0, s{S_SLOT}, {a * 4096}")
                e(f"s_add_u32 s{S_T0}, s{S_WO_}, {a * 16 * 8192}")
                for b in range(4):
                    e(f"buffer_load_dwordx4 v{WQA + b}, {srd_(SRD_WQ)}, s{S_T0} offen offset:{b * 1024} {o['qpol']} lds")
            e(f"s_add_u32 m0, s{S_SLOT}, {16384 + a * 4096}")
            e(f"s_add_u32 s{S_T0}, s{S_XO}, {a * 32 * 1280}")
            for b in range(4 if a < 4 else 2):
                e(f"buffer_load_dwordx4 v{XA + b}, {srd_(SRD_X)}, s{S_T0} offen offset:{b * 1024} {o['qpol']} lds")
        e(f"s_add_u32 s{S_C}, s{S_C}, 1\ns_cmp_eq_u32 s{S_C}, 10\ns_cselect_b32 s{S_C}, 0, s{S_C}")
        e(f"s_add_u32 s{S_SLOT}, s{S_SLOT}, {QSLOT}\ns_cmp_eq_u32 s{S_SLOT}, {QEND}\ns_cselect_b32 s{S_SLOT}, {QS0}, s{S_SLOT}")
        e(f"s_setpc_b64 s[{S_RET}:{S_RET + 1}]")

        def qstep(s):
            e(f"s_call_b64 s[{S_RET}:{S_RET + 1}], L_qstep")
            self.vq += [f"q{s}"] * 34

        def qbar(s):
            self.vwait(f"q{s}")
            if o.get("qsteps"):
                e(f"s_memrealtime s[{S_TAG}:{S_TAG + 1}]\ns_waitcnt lgkmcnt(0)\nv_writelane_b32 v44, s{S_TAG}, {s + 2}")
            e("s_barrier")
            if o.get("qsteps"):
                e(f"s_memrealtime s[{S_TAG}:{S_TAG + 1}]\ns_waitcnt lgkmcnt(0)\nv_writelane_b32 v44, s{S_TAG}, {s + 14}")

        def tile(srd, areg, idx, lds, tag):
            if o["strided"]:
                e(f"s_add_u32 s{S_T2}, s{S_ROT}, {idx}\ns_and_b32 s{S_T2}, s{S_T2}, 31\ns_lshl_b32 s{S_T2}, s{S_T2}, 8")
            elif o.get("linrot"):
                e(f"s_add_u32 s{S_T2}, s{S_ROT}, {idx}\ns_and_b32 s{S_T2}, s{S_T2}, 31\ns_lshl_b32 s{S_T2}, s{S_T2}, 13")
            else:
                e(f"s_lshl_b32 s{S_T2}, {idx}, 13")
            for a in range(2):
                e(f"s_add_u32 m0, {lds}, {a * 4096}" if isinstance(lds, str) else f"s_mov_b32 m0, {lds + a * 4096}")
                e(f"s_add_u32 s{S_T0}, s{S_T2}, {a * (131072 if o['strided'] else 4096)}")
                for b in range(4):
                    e(f"buffer_load_dwordx4 v{areg + b}, {srd_(srd)}, s{S_T0} offen offset:{b * 1024} {o['kvpol']} lds")
            self.vq += [tag] * 8

        DT = 4 * o["deep"]
        slot = lambda i: (i & 7 if i < DT else i & 3) * 16384
        K = lambda i: tile(SRD_K, KA, i, slot(i), f"k{i}")
        V = lambda i: tile(SRD_V, VA, i, slot(i) + 8192, f"v{i}")

        e("L_ldq_go:")
        if o["inl0"]:
            self.vq += ["q0"] * 34
        else:
            self.stamp("go", "l")
            qstep(0)
        rs, bs = (13, 32768 - 1024) if o["strided"] else (8, 0)
        for b in range(4):
            e(f"v_or_b32 v17, {4 * b}, v1\nv_xor_b32 v17, v17, v2\nv_lshlrev_b32 v17, 4, v17\nv_lshl_add_u32 v17, v1, {rs}, v17")
            e(f"v_add_u32 v{KA + b}, {b * bs}, v17")
        for b in range(2):
            e(f"v_or_b32 v17, {4 * b}, v1\nv_lshlrev_b32 v17, 1, v17\nv_xor_b32 v17, v17, v2\nv_lshlrev_b32 v17, 4, v17\nv_lshl_add_u32 v17, v1, {rs}, v17")
            e(f"v_add_u32 v{VA + b}, {b * bs}, v17\nv_add_u32 v{VA + b + 2}, {(b + 2) * bs}, v17")
        e(f"s_lshl_b32 s{S_BH}, s{S_B}, 5\ns_add_u32 s{S_BH}, s{S_BH}, s{S_H}\ns_lshl_b32 s{S_T0}, s{S_BH}, 18")
        self.srd(SRD_K, 6, f"s{S_T0}", 0 if nkv else 0x40000)
        self.srd(SRD_V, 8, f"s{S_T0}", 0 if nkv else 0x40000)
        self.srd(SRD_WO, 12, None, 5242880)
        self.srd(SRD_WS, 18, None, 0x10000000)
        self.srd(SRD_DBG, 16, None, 256)
        self.order_setup()
        A, B, C = [int(x) for x in o["abc"].split(",")]
        e(f"s_mul_i32 s{S_ROT}, s{S_I}, {A}\ns_mul_i32 s{S_T0}, s{S_KG}, {B}\ns_add_u32 s{S_ROT}, s{S_ROT}, s{S_T0}")
        e(f"s_mul_i32 s{S_T0}, s{S_B}, {C}\ns_add_u32 s{S_ROT}, s{S_ROT}, s{S_T0}")
        e(f"s_add_u32 s{S_T0}, s{S_KG}, 1")
        for n in range(5):
            e(f"v_add_u32 v16, {64 * n}, v0\nv_mul_u32_u24 v17, 6554, v16\nv_lshrrev_b32 v17, 16, v17")
            e("v_mul_u32_u24 v18, 10, v17\nv_sub_u32 v16, v16, v18\nv_lshrrev_b32 v18, 1, v16")
            e(f"v_add_u32 v19, s{S_T0}, v18\nv_and_b32 v19, 3, v19\nv_cmp_gt_u32 vcc, 4, v18")
            e("v_and_b32 v16, 1, v16\nv_mul_u32_u24 v17, 1280, v17\nv_cndmask_b32 v18, v18, v19, vcc")
            e("v_lshl_add_u32 v17, v16, 4, v17\nv_lshl_add_u32 v17, v18, 5, v17")
            e(f"v_subrev_u32 v{DA + n}, {1024 * n if n < 4 else 0}, v17")
        e("v_mov_b32 v54, 0\nv_and_b32 v55, 7, v0\nv_lshlrev_b32 v55, 7, v55")
        e(f"v_lshlrev_b32 v16, 4, v0\nv_add_u32 v16, {SYNC}, v16\nv_mov_b64 v[48:49], 0\nv_mov_b64 v[50:51], 0")
        e("ds_write_b128 v16, v[48:51]")
        e(f"v_lshlrev_b32 v{V_LA}, 2, v0\nv_add_u32 v{V_LA}, {SYNC}, v{V_LA}\nv_mov_b32 v{V_L}, 0")
        e(f"v_min_u32 v{V_PA}, 2, v0\nv_lshlrev_b32 v{V_PA}, 8, v{V_PA}\nv_add_u32 v{V_PA}, {SYNC + 256}, v{V_PA}")
        e("s_waitcnt lgkmcnt(0)")
        kv = [lambda: K(0), lambda: K(1), lambda: V(0), lambda: K(2), lambda: V(1), lambda: K(3), lambda: V(2)]
        kvq = o["kvq"]
        plan = {s: [] for s in range(10)}
        for n, f in enumerate(kv):
            plan[kvq + n * (10 - kvq) // 7].append(f)
        qstep(1)
        for s in range(10):
            qbar(s)
            if s + 2 < 10:
                qstep(s + 2)
            if s == o.get("warmq", -1):
                e(f"s_lshl_b32 s{S_T1}, s{S_KG}, 5\ns_add_u32 s{S_T1}, s{S_T1}, s{S_J}\ns_mul_i32 s{S_T1}, s{S_T1}, 40960")
                e("v_lshlrev_b32 v18, 7, v0")
                for n in range(5):
                    e(f"buffer_load_dword v19, v18, {srd_(SRD_WO)}, s{S_T1} offen\ns_add_u32 s{S_T1}, s{S_T1}, 8192")
                    self.vq.append("warm")
            if s == kvq:
                self.stamp("kv_start", "l")
            for f in plan[s]:
                f()
        self.vwait("k0")
        e("s_barrier")
        self.stamp("b_pre", "l")

        def publish():
            e(f"v_writelane_b32 v{V_L}, s{S_PUB}, 0\nds_write_b32 v{V_LA}, v{V_L}")

        nneed = [0]

        def need():
            k = nneed[0]
            nneed[0] += 1
            e(f"s_cmp_ge_u32 s{S_MINP}, s{S_REQ}\ns_cbranch_scc1 L_have{k}")
            e(f"s_call_b64 s[{S_RET}:{S_RET + 1}], L_need\nL_have{k}:")

        W0 = o["w0"]
        W1 = max(W0 + 6, DT + 3)
        NMIX = self.nmix()
        nshare = 4 if o["map"] == 1 else 8
        NWT = -(-(32 - NMIX) // nshare)
        WT = o.get("wt") or (W0 + 6 if W1 >= W0 + 6 + NWT else W1 + NMIX - 6)
        assert WT + NWT <= 31

        def wsrc(n):
            if isinstance(n, str):
                e(f"s_and_b32 s{S_T1}, {n}, 28\ns_lshr_b32 s{S_T1}, s{S_ORD}, s{S_T1}\ns_and_b32 s{S_T1}, s{S_T1}, 7\ns_and_b32 s{S_T0}, {n}, 3")
                e(f"s_lshl2_add_u32 s{S_T1}, s{S_T1}, s{S_T0}\ns_mul_i32 s{S_WO_}, s{S_T1}, {32 * 1280}\ns_add_u32 s{S_WO_}, s{S_WO_}, s{S_OB}")
            elif n % 4 == 0 or n in (NRES, NMIX):
                e(f"s_bfe_u32 s{S_T1}, s{S_ORD}, {(3 << 16) | (n & 28):#x}")
                e(f"s_mul_i32 s{S_WO_}, s{S_T1}, {128 * 1280}\ns_add_u32 s{S_WO_}, s{S_WO_}, s{S_OB}")
                if n % 4:
                    e(f"s_add_u32 s{S_WO_}, s{S_WO_}, {(n % 4) * 32 * 1280}")

        def wstep(lds):
            e(f"s_mov_b32 m0, {lds}\ns_mov_b32 s{S_T0}, s{S_WO_}")
            for n in range(4):
                e(f"buffer_load_dwordx4 v{DA + n}, {srd_(SRD_WO)}, s{S_T0} offen offset:{n * 1024} {o['wpol']} lds")
            e(f"s_add_u32 m0, {lds}, 4096" if isinstance(lds, str) else f"s_mov_b32 m0, {lds + 4096}")
            e(f"s_add_u32 s{S_WO_}, s{S_WO_}, {32 * 1280}")
            e(f"buffer_load_dwordx4 v{DA + 4}, {srd_(SRD_WO)}, s{S_T0} offen {o['wpol']} lds")
            self.vq += ["w"] * 5

        e(f"s_mul_i32 s{S_OB}, s{S_KG}, {1024 * 1280}\ns_mul_i32 s{S_T0}, s{S_I}, 160\ns_add_u32 s{S_OB}, s{S_OB}, s{S_T0}")
        e("v_lshrrev_b32 v18, 1, v0\nv_mul_u32_u24 v18, 1280, v18\nv_and_b32 v19, 1, v0\nv_mul_u32_u24 v19, 156, v19\nv_add_u32 v46, v18, v19")
        e(f"s_mov_b32 s{S_N}, 3\ns_mov_b32 s{S_MINP}, 0\ns_mov_b32 s{S_PUB}, 0")
        e("L_kv:")
        e(f"s_cmp_ge_u32 s{S_N}, {DT + 3}\ns_cselect_b32 s{S_T0}, 2, 6\ns_max_u32 s{S_REQ}, s{S_N}, 6\ns_sub_u32 s{S_REQ}, s{S_REQ}, s{S_T0}")
        need()
        e(f"s_add_u32 s{S_XO}, s{S_N}, 1\ns_cmp_ge_u32 s{S_XO}, {DT}\ns_cselect_b32 s{S_T1}, 3, 7\ns_and_b32 s{S_T1}, s{S_XO}, s{S_T1}\ns_lshl_b32 s{S_T1}, s{S_T1}, 14")
        tile(SRD_K, KA, f"s{S_XO}", f"s{S_T1}", "")
        e(f"s_cmp_ge_u32 s{S_N}, {DT}\ns_cselect_b32 s{S_T1}, 3, 7\ns_and_b32 s{S_T1}, s{S_N}, s{S_T1}\ns_lshl_b32 s{S_T1}, s{S_T1}, 14\ns_add_u32 s{S_T1}, s{S_T1}, 8192")
        tile(SRD_V, VA, f"s{S_N}", f"s{S_T1}", "")
        e(f"s_sub_u32 s{S_C}, s{S_N}, {W0}\ns_mov_b32 s{S_T1}, 13\ns_cmp_lt_u32 s{S_C}, 6\ns_cbranch_scc1 L_kv_w")
        e(f"s_sub_u32 s{S_C}, s{S_N}, {W1}\ns_cmp_ge_u32 s{S_C}, {NMIX - 6}\ns_cbranch_scc1 L_kv_now")
        e(f"s_add_u32 s{S_C}, s{S_C}, 6\ns_mov_b32 s{S_T1}, -6")
        e("L_kv_w:")
        e(f"s_add_u32 s{S_T1}, s{S_T1}, s{S_C}\ns_mul_i32 s{S_SLOT}, s{S_T1}, {KSTEP}\ns_add_u32 s{S_SLOT}, s{S_SLOT}, 65536")
        wsrc(f"s{S_C}")
        wstep(f"s{S_SLOT}")
        e("s_branch L_kv_pub")
        e("L_kv_now:")
        if o["warmr"]:
            e(f"s_sub_u32 s{S_C}, s{S_N}, {WT}\ns_cmp_ge_u32 s{S_C}, {NWT}\ns_cbranch_scc1 L_kv_pub")
            e(f"s_and_b32 s{S_T0}, s{S_B}, {nshare - 1}\ns_mul_i32 s{S_C}, s{S_C}, {nshare}\ns_add_u32 s{S_C}, s{S_C}, s{S_T0}\ns_add_u32 s{S_C}, s{S_C}, {NMIX}")
            e(f"s_cmp_ge_u32 s{S_C}, 32\ns_cbranch_scc1 L_kv_pub")
            wsrc(f"s{S_C}")
            e(f"buffer_load_dword v19, v46, {srd_(SRD_WO)}, s{S_WO_} offen")
        e("L_kv_pub:")
        e(f"s_sub_u32 s{S_T1}, s{S_N}, 1\ns_max_u32 s{S_PUB}, s{S_PUB}, s{S_T1}")
        if o.get("xwin"):
            lim, w = o["xwin"].split(",")
            e(f"s_cmp_ge_u32 s{S_N}, {lim}\ns_cbranch_scc1 L_xw\ns_waitcnt vmcnt({w})\nL_xw:")
        e(f"s_waitcnt vmcnt({o.get('kvwin', 32)})")
        publish()
        if o.get("tsteps"):
            e(f"s_memrealtime s[{S_RET}:{S_RET + 1}]\ns_waitcnt lgkmcnt(0)\ns_mov_b32 m0, s{S_N}\nv_writelane_b32 v44, s{S_RET}, m0")
        e(f"s_and_b32 s{S_T0}, s{S_N}, 3\ns_cmp_eq_u32 s{S_T0}, 3\ns_cbranch_scc1 L_kv_x")
        e("L_kv_n:")
        e(f"s_add_u32 s{S_N}, s{S_N}, 1\ns_cmp_lt_u32 s{S_N}, 31\ns_cbranch_scc1 L_kv")
        e(f"s_mov_b32 s{S_REQ}, 29")
        need()
        self.vq = ["s29"] * 16 + ["s30"] * 16
        V(31)
        self.stamp("kv_end", "l")
        lag = o["wlag"]
        have = 29
        pend = [("s29", 30), ("s30", 31), ("v31", 32)]

        def flush(k):
            while len(pend) > k:
                tag, val = pend.pop(0)
                self.vwait(tag)
                e(f"s_max_u32 s{S_PUB}, s{S_PUB}, {val}")
                publish()
                if val == 32:
                    self.stamp("kv_landed", "l")

        flush(2)
        for n in range(NMIX, 32):
            req = 34 if n == 31 else (30 + ((waddr(n) + KSTEP - 1) >> 14) if n >= NRES else 0)
            if req > have:
                flush(0 if n == 31 or (pend and pend[0][1] <= 32) else len(pend))
                e(f"s_mov_b32 s{S_REQ}, {req}")
                need()
                have = req
            wsrc(n)
            wstep(waddr(n))
            self.vq[-5:] = [f"w{n}"] * 5
            pend.append((f"w{n}", 33 + n - NMIX))
            if n < 31:
                flush(lag)
            if o.get("tsteps"):
                e(f"s_memrealtime s[{S_RET}:{S_RET + 1}]\ns_waitcnt lgkmcnt(0)\nv_writelane_b32 v44, s{S_RET}, {32 + n}")
        self.stamp("wo_issued", "l")
        flush(0)
        self.stamp("wo_landed", "l")
        if o.get("tsteps") or o.get("qsteps"):
            e(f"s_lshl_b32 s{S_T0}, s2, 8\ns_add_u32 s{S_T0}, s{S_T0}, {LANE_OFF}\nv_lshlrev_b32 v45, 2, v0")
            e("v_subrev_u32 v44, s78, v44")
            e(f"buffer_store_dword v44, v45, {srd_(SRD_WS)}, s{S_T0} offen")
        self.stamp_store("l")
        e("s_endpgm")

        e("L_kv_x:")
        TG, ZV = 52, 54
        e(f"s_cmp_lg_u32 s{S_N}, 3\ns_cbranch_scc1 L_kv_x7")
        e(f"buffer_load_dwordx2 {v(TG, 2)}, v{ZV}, {srd_(SRD_DBG)}, 0 offen sc1")
        e("s_branch L_kv_n")
        e("L_kv_x7:")
        e(f"s_cmp_lg_u32 s{S_N}, 7\ns_cbranch_scc1 L_kv_x27")
        e(f"s_mov_b32 s{S_SPIN}, 0")
        e("L_tag:")
        e(f"v_readfirstlane_b32 s{S_TAG + 1}, v{TG + 1}\nv_readfirstlane_b32 s{S_TAG}, v{TG}")
        e(f"s_add_u32 s{S_SPIN}, s{S_SPIN}, 1\ns_cmp_lg_u32 s{S_TAG + 1}, 0\ns_cbranch_scc1 L_tag_ok")
        e(f"s_cmp_ge_u32 s{S_SPIN}, 0x40000\ns_cbranch_scc1 L_tag_ok\ns_sleep 8")
        e(f"buffer_load_dwordx2 {v(TG, 2)}, v{ZV}, {srd_(SRD_DBG)}, 0 offen sc1")
        e("s_waitcnt vmcnt(0)\ns_branch L_tag")
        e("L_tag_ok:")
        e(f"v_writelane_b32 v{V_L}, s{S_TAG}, 1\nv_writelane_b32 v{V_L}, s{S_TAG + 1}, 2")
        e("s_branch L_kv_n")
        e("L_kv_x27:")
        e(f"s_cmp_lg_u32 s{S_N}, 27\ns_cbranch_scc1 L_kv_n")
        if o["ftouch"]:
            e(f"s_lshl_b32 s{S_T0}, s{S_BH}, 9\ns_add_u32 s{S_T0}, s{S_T0}, {FLAG_A}\ns_mov_b64 exec, 7")
            e(f"buffer_load_dword v19, v55, {srd_(SRD_WS)}, s{S_T0} offen")
            e("s_mov_b64 exec, -1")
        if o["pf_code"]:
            self.code_srd()
            e(f"s_and_b32 s{S_T0}, s{S_J}, 3\ns_lshl_b32 s{S_T0}, s{S_T0}, 13\nv_lshlrev_b32 v18, 7, v0")
            e(f"buffer_load_dword v19, v18, {srd_(SRD_CODE)}, s{S_T0} offen")
        e("s_branch L_kv_n")

        def rdprog():
            e(f"ds_read_b32 v{V_P}, v{V_PA}\ns_waitcnt lgkmcnt(0)")
            e(f"v_readlane_b32 s{S_MINP}, v{V_P}, 0\nv_readlane_b32 s{S_T0}, v{V_P}, 1\nv_readlane_b32 s{S_T1}, v{V_P}, 2\ns_nop 0")
            e(f"s_min_u32 s{S_MINP}, s{S_MINP}, s{S_T0}\ns_min_u32 s{S_MINP}, s{S_MINP}, s{S_T1}")
            e(f"s_cmp_ge_u32 s{S_MINP}, s{S_REQ}\ns_cbranch_scc1 L_need_ret")

        e("L_need:")
        e(f"s_mov_b32 s{S_SPIN}, 0")
        e("L_need_spin:")
        rdprog()
        if o.get("nsleep"):
            e(f"s_sleep {o['nsleep']}")
        e(f"s_add_u32 s{S_SPIN}, s{S_SPIN}, 1\ns_cmp_lt_u32 s{S_SPIN}, {SPIN_MAX}\ns_cbranch_scc1 L_need_spin")
        e("L_need_ret:")
        e(f"s_setpc_b64 s[{S_RET}:{S_RET + 1}]")

    def compute_setup(self):
        e = self.e
        e("L_compute:")
        if self.o["pf_code"]:
            self.code_srd()
            e(f"s_and_b32 s{S_T0}, s{S_J}, 3\ns_lshl_b32 s{S_T0}, s{S_T0}, 13\nv_lshlrev_b32 v1, 7, v0")
            e(f"s_cmp_lg_u32 s{S_WAVE}, 0\ns_cbranch_scc1 L_nopf")
            e(f"buffer_load_dword v251, v1, {srd_(SRD_CODE)}, s{S_T0} offen")
            e("L_nopf:")
        e("s_waitcnt lgkmcnt(0)")
        self.srd(SRD_OUT, 14, None, 1474560)
        self.srd(SRD_DBG, 16, None, 256)
        self.srd(SRD_WS, 18, None, 0x10000000)
        self.order_setup()
        e(f"s_lshl_b32 s{S_BH}, s{S_B}, 5\ns_add_u32 s{S_BH}, s{S_BH}, s{S_H}")
        e(f"s_lshl2_add_u32 s{S_T0}, s2, s{S_WAVE}\ns_cmp_lg_u32 s{S_T0}, 1\ns_cbranch_scc1 L_notag")
        e(f"s_memrealtime s[{S_RET}:{S_RET + 1}]\nv_mov_b32 v16, 0\ns_waitcnt lgkmcnt(0)")
        e(f"s_or_b32 s{S_RET + 1}, s{S_RET + 1}, 0x40000000")
        e(f"v_mov_b32 v18, s{S_RET}\nv_mov_b32 v19, s{S_RET + 1}\ns_mov_b64 exec, 1")
        e(f"buffer_store_dwordx2 v[18:19], v16, {srd_(SRD_DBG)}, 0 offen sc1")
        e("s_mov_b64 exec, -1\ns_nop 1")
        e("L_notag:")
        e("v_lshrrev_b32 v1, 4, v0\nv_and_b32 v2, 15, v0\nv_lshrrev_b32 v3, 2, v2\nv_and_b32 v16, 3, v0")
        e("v_and_b32 v17, 1, v1\nv_lshlrev_b32 v18, 1, v17\nv_lshl_or_b32 v17, v17, 2, v3\nv_lshrrev_b32 v19, 1, v1\nv_or_b32 v18, v18, v19")
        e("v_lshl_add_u32 v19, v1, 3, v3\nv_lshlrev_b32 v19, 8, v19\nv_lshl_add_u32 v19, v16, 3, v19")
        e(f"v_add_u32 v19, {QS0}, v19")
        for t in range(8):
            e(f"v_xor_b32 v20, {t}, v17\nv_lshl_add_u32 v{AW(t)}, v20, 5, v19")
        e(f"s_mul_i32 s{S_T0}, s{S_WAVE}, {48 * 128}\ns_add_u32 s{S_T0}, s{S_T0}, {QS0 + 16384}")
        e(f"v_lshlrev_b32 v19, 7, v2\nv_add_u32 v19, s{S_T0}, v19\nv_lshrrev_b32 v21, 1, v2")
        for s in range(2):
            e(f"v_or_b32 v20, {4 * s}, v1\nv_xor_b32 v20, v20, v21\nv_lshl_add_u32 v{AX(s)}, v20, 4, v19")
        e("v_lshlrev_b32 v19, 8, v2")
        for s in range(4):
            e(f"v_or_b32 v20, {4 * s}, v18\nv_xor_b32 v20, v20, v2\nv_lshl_add_u32 v{AK(s)}, v20, 4, v19")
        e(f"v_lshl_add_u32 v19, v1, 2, v3\nv_lshlrev_b32 v19, 8, v19\nv_lshl_add_u32 v19, v16, 3, v19\nv_add_u32 v19, {8192 + 65536}, v19")
        for t in range(8):
            e(f"v_xor_b32 v20, {t}, v17\nv_lshl_add_u32 v{AV(t)}, v20, 5, v19")
        e(f"v_mov_b32 v{V_LA}, {SYNC}\nv_mov_b32 v{V_P}, 0")
        e(f"s_lshl_b32 s{S_T0}, s{S_WAVE}, 8\ns_add_u32 s{S_T0}, s{S_T0}, {SYNC + 256}\nv_lshlrev_b32 v19, 2, v0\nv_add_u32 v{V_PA}, s{S_T0}, v19")
        e(f"v_lshrrev_b32 v19, 2, v0\nv_mul_u32_u24 v19, 160, v19\nv_lshl_add_u32 v{RW}, v16, 3, v19")
        e(f"v_add_u32 v{RW + 1}, 65536, v{RW}\nv_add_u32 v{RW + 2}, {65536 + 12 * KSTEP}, v{RW}")
        for r in range(16, 124, 2):
            e(f"v_mov_b64 v[{r}:{r + 1}], 0")
        e(f"v_mov_b64 v[{P_(2)}:{P_(2) + 1}], 0\nv_mov_b64 v[{P_(2) + 2}:{P_(2) + 3}], 0")
        for r in range(4):
            e(f"v_mov_b32 v{ONES + r}, 0x3f803f80")
        drops = [int(x) for x in str(self.o["lag"]).split(",") if x != ""]
        mask = 0xffffffff
        for t in drops:
            mask &= ~(1 << (31 - (t - 1)))
        for t in range(32):
            lag = sum(1 for x in drops if x > t)
            assert lag <= (1 if t >= 4 * self.o["deep"] - 1 else min(5, 4 * self.o["deep"] - t))
        e(f"s_mov_b32 s{S_LAG}, {mask:#x}")
        if self.o.get("refresh"):
            lo, n, step = [int(x) for x in self.o["refresh"].split(",")]
            m = 0
            for k in range(n):
                m |= 1 << (31 - (lo + k * step))
            e(f"s_mov_b32 s{S_FRC}, {m:#x}")
        e(f"s_mov_b32 s{S_NEED}, {1 + len(drops)}\ns_mov_b32 s{S_MASK}, 0x40004000\ns_mov_b32 s{S_FLIP}, 0x10000")

    def qphase(self):
        e = self.e

        def rdw(t, s, hh):
            return ("ds", f"ds_read_b64_tr_b16 {a_(WF(t) + 2 * hh, 2)}, v{AW(t)} offset:{s * 8192 + hh * 1024}")

        def rdx(p, j):
            return ("ds", f"ds_read_b128 {a_(XF(p, j), 4)}, v{AX(p)} offset:{j * 2048}")

        def wf(*ts):
            r = set()
            for t in ts:
                r |= regs_of(a_(WF(t), 4))
            return r

        M, fill = [], {}
        for s in range(2):
            for t in range(8):
                for j in range(3):
                    M.append((v(O_(j, t), 4), a_(WF(t), 4), a_(XF(s, j), 4), v(O_(j, t), 4)))
        add = lambda r: f"v_add_u32 v{r}, s{S_T0}, v{r}"
        F = lambda k: fill.setdefault(k, [])
        for t in range(8):
            if t in (1, 3, 5):
                F(3 * t + 2).append(("wait", wf(t + 1, t + 2)))
            F(3 * t + 2).append(rdw(t, 1, 0))
            F(3 * t + 3).append(rdw(t, 1, 1))
        F(2).insert(0, ("wait", wf(1)))
        for j in range(3):
            F(3 * j + 4).append(rdx(1, j))
        F(23).insert(0, ("wait", wf(0, 1) | regs_of(a_(XF(1, 0), 12))))
        b = 24
        F(b + 1).append(f"s_add_u32 s{S_SLOT}, s{S_SLOT}, 1")
        F(b + 2).append(f"s_cmp_eq_u32 s{S_SLOT}, 3")
        F(b + 3).append(f"s_cselect_b32 s{S_T0}, {(-2 * QSLOT) & 0xffffffff}, s{S_T1}")
        F(b + 4).append(f"s_cselect_b32 s{S_SLOT}, 0, s{S_SLOT}")
        F(b + 4).extend([add(AW(0)), add(AW(1))])
        F(b + 5).extend([("wait0",), "s_barrier"])
        F(b + 6).extend([rdw(0, 0, 0), add(AX(0))])
        F(b + 7).extend([rdw(0, 0, 1), add(AW(2))])
        F(b + 8).extend([rdx(0, 0), rdw(1, 0, 0)])
        F(b + 9).extend([rdx(0, 1), rdw(1, 0, 1)])
        F(b + 10).extend([rdx(0, 2), add(AX(1))])
        F(b + 11).extend([rdw(2, 0, 0), add(AW(3))])
        F(b + 12).extend([rdw(2, 0, 1), add(AW(4))])
        F(b + 13).extend([rdw(3, 0, 0), add(AW(5))])
        F(b + 14).extend([rdw(3, 0, 1), add(AW(6))])
        F(b + 15).extend([rdw(4, 0, 0), add(AW(7))])
        F(b + 16).append(rdw(4, 0, 1))
        F(b + 17).append(rdw(5, 0, 0))
        F(b + 18).append(rdw(5, 0, 1))
        F(b + 19).append(f"s_sub_u32 s{S_CNT}, s{S_CNT}, 1")
        F(b + 20).extend([f"s_cmp_lg_u32 s{S_CNT}, 0", rdw(6, 0, 0)])
        F(b + 21).append(rdw(6, 0, 1))
        F(b + 22).append(("wait", wf(0) | regs_of(a_(XF(0, 0), 12))))
        F(b + 23).extend([rdw(7, 0, 0), rdw(7, 0, 1)])

        e(f"s_mov_b32 s{S_SLOT}, 0\ns_mov_b32 s{S_T1}, {QSLOT}\ns_mov_b32 s{S_CNT}, 10")
        e("s_barrier")
        first = [rdw(0, 0, 0), rdw(0, 0, 1), rdx(0, 0), rdw(1, 0, 0), rdx(0, 1), rdw(1, 0, 1), rdx(0, 2)]
        for t in range(2, 8):
            first += [rdw(t, 0, 0), rdw(t, 0, 1)]
        for x in first:
            self.ds(x[1])
        self.lwait(wf(0) | regs_of(a_(XF(0, 0), 12)))
        entry = [set(x) for x in self.lq]
        e(".p2align 3")
        e("L_q:")
        self.strict = True
        if self.o.get("q_nomfma"):
            for k in range(len(M)):
                M[k] = (v(S_(0, 0), 4), M[k][1], M[k][2], v(S_(0, 0), 4))
        self.stream(M, fill)
        self.strict = False
        assert [set(x) for x in self.lq] == entry, "loop-carried LDS queue differs"
        e("s_cbranch_scc1 L_q")
        self.lwait0()
        for s in range(4):
            for u in range(2):
                self.ds(f"ds_read_b128 {a_(KF(u, s), 4)}, v{AK(s)} offset:{u * 4096}")
        c = math.log2(math.e) / math.sqrt(128.0)
        e(f"s_mov_b32 s{S_RET}, {f2u(c):#x}\ns_mov_b32 s{S_RET + 1}, {f2u(c):#x}\ns_mov_b32 s{S_CNT}, 8")

        def prep(j):
            ops = []
            for r in range(O_(j, 0), O_(j, 0) + 32, 2):
                ops.append(f"v_pk_mul_f32 v[{r}:{r + 1}], v[{r}:{r + 1}], s[{S_RET}:{S_RET + 1}]")
            for s in range(4):
                ops += self.pack_ops(j, s)
            for r in range(O_(j, 0), O_(j, 0) + 32, 2):
                ops.append(f"v_mov_b64 v[{r}:{r + 1}], 0")
            for s in range(4):
                q = Q_(j, s)
                ops += [f"v_permlane16_swap_b32 v{q}, v{q + 2}", f"v_permlane16_swap_b32 v{q + 1}, v{q + 3}"]
            return ops

        def ref(j):
            ops = self.rowmax(j)
            ops += [f"v_sub_f32 v{NM(j) + r}, 0, v1" for r in range(4)]
            return ops

        def with_qk(j, ops):
            M = [(d, a, b, "0" if c == v(NM(j), 4) else c) for d, a, b, c in self.qk(j)]
            if self.o["nopk"]:
                while ops[0].startswith("v_pk_"):
                    e(ops.pop(0))
            fill = {k: ops[2 * k:2 * k + 2] for k in range(7)}
            fill[7] = ops[14:]
            self.stream(M, fill)

        for x in prep(0) + ["s_nop 0"]:
            e(x)
        with_qk(0, prep(1) + ["s_nop 0"])
        with_qk(1, prep(2) + ["s_nop 0"])
        zero_v = [f"v_accvgpr_write_b32 a{VF(0) + r}, 0" for r in range(32)]
        with_qk(2, zero_v[:16] + ref(0) + [f"v_sub_f32 v{S_(0, 0) + k}, v{S_(0, 0) + k}, v1" for k in range(8)])
        for x in ref(1) + zero_v[16:] + ref(2):
            e(x)

    def rowmax(self, j):
        s0 = S_(j, 0)
        return [f"v_max3_f32 v1, v{s0}, v{s0 + 1}, v{s0 + 2}", f"v_max3_f32 v1, v1, v{s0 + 3}, v{s0 + 4}",
                f"v_max3_f32 v1, v1, v{s0 + 5}, v{s0 + 6}", f"v_max_f32 v1, v1, v{s0 + 7}",
                "v_mov_b32 v2, v1", "s_nop 1", "v_permlane16_swap_b32 v1, v2", "v_max_f32 v1, v1, v2",
                "v_mov_b32 v2, v1", "s_nop 1", "v_permlane32_swap_b32 v1, v2", "v_max_f32 v1, v1, v2",
                "v_add_f32 v1, 0x40e00000, v1"]

    def pack_ops(self, j, s):
        q = Q_(j, s)
        return [f"v_cvt_pk_bf16_f32 v{q + n}, v{O_(j, 2 * s) + 2 * n}, v{O_(j, 2 * s) + 2 * n + 1}" for n in range(4)]

    def qk(self, j):
        out = []
        for s in range(4):
            for u in range(2):
                c = v(NM(j), 4) if s == 0 else v(S_(j, u), 4)
                out.append((v(S_(j, u), 4), a_(KF(u, s), 4), v(Q_(j, s), 4), c))
        return out

    def pv(self, j):
        out = [(v(O_(j, t), 4), a_(VF(t), 4), v(P_(j), 4), v(O_(j, t), 4)) for t in range(8)]
        out.append((v(L_(j), 4), v(ONES, 4), v(P_(j), 4), v(L_(j), 4)))
        return out

    def site(self, target):
        k = len(self.sites)
        self.sites.append(target)
        return f"s_cbranch_vccnz L_stub{k}\nL_ret{k}:"

    def sm_ops(self, j, inloop=True):
        X = [f"v_exp_f32 v{E_ + k}, v{S_(j, 0) + k}" for k in range(8)]
        C = [f"v_cvt_pk_bf16_f32 v{P_(j) + k}, v{E_ + 2 * k}, v{E_ + 2 * k + 1}" for k in range(4)]
        p = P_(j)
        K = [f"v_or3_b32 v{V_ACC}, v{p}, v{p + 1}, v{p + 2}",
             f"v_bitop3_b32 v{V_ACC}, v{V_ACC}, v{p + 3}, s{S_MASK} bitop3:0xa8",
             f"v_cmp_ne_u32 vcc, {'s72' if self.o.get('refresh') and inloop else 0}, v{V_ACC}",
             self.site(f"L_rare{j}")]
        return X, C, K

    def tile(self, a):
        M = self.qk(1) + self.pv(2) + self.qk(2) + self.pv(0) + self.qk(0) + self.pv(1)
        X0, C0, K0 = self.sm_ops(0)
        X1, C1, K1 = self.sm_ops(1)
        X2, C2, K2 = self.sm_ops(2)

        def rv(t, hh):
            return ("ds", f"ds_read_b64_tr_b16 {a_(VF(t) + 2 * hh, 2)}, v{AV(t)} offset:{a * 16384 + hh * 4096}")

        def rk(k):
            u, s = k & 1, k >> 1
            return ("ds", f"ds_read_b128 {a_(KF(u, s), 4)}, v{AK(s)} offset:{((a + 1) & 3) * 16384 + u * 4096}")

        kf = lambda *ks: set().union(*[regs_of(a_(KF(k & 1, k >> 1), 4)) for k in ks])
        flip = lambda r: f"v_xor_b32 v{r}, s{S_FLIP}, v{r}"
        fill = {
            0: [X0[7]], 1: [C0[0], C0[1]], 2: [C0[2], C0[3]], 3: [K0[0], K0[1]],
            4: [K0[2], f"v_add_u32 v{V_P}, 1, v{V_P}"],
            5: [("wait0",), ("ds", f"ds_write_b32 v{V_PA}, v{V_P}")],
            6: [K0[3], f"v_cmp_gt_u32 vcc, s{S_NEED}, v{V_L}"], 7: [],
            8: [self.site("L_spin"), rv(0, 0)],
            9: [f"s_add_u32 s{S_LAG}, s{S_LAG}, s{S_LAG}", rv(0, 1), rv(1, 0)],
            10: [f"s_addc_u32 s{S_NEED}, s{S_NEED}, 0", rv(1, 1), rv(2, 0)], 11: [X1[0]],
            12: [rv(2, 1), rv(3, 0)], 13: [X1[1]], 14: [rv(3, 1), rv(4, 0)], 15: [X1[2]],
            16: [rv(4, 1), rv(5, 0)], 17: [X1[3]], 18: [rv(5, 1), C1[0]], 19: [rv(6, 0), C1[1]],
            20: [X1[4]], 21: [rv(6, 1), rv(7, 0)], 22: [X1[5]], 23: [rv(7, 1), rk(0)],
            24: [("wait", regs_of(a_(VF(0), 24))), X1[6]], 25: [rk(1), rk(2)], 26: [X1[7]],
            27: [rk(3), C1[2]], 28: [rk(4), C1[3]], 29: [rk(5), K1[0]],
            30: [("wait", regs_of(a_(VF(6), 8))), rk(6), K1[1]], 31: [rk(7), K1[2]], 32: [X2[0]],
            33: [K1[3], ("wait", kf(0, 1, 2, 3)), X2[1]],
            34: [X2[2]], 35: [X2[3]], 36: [X2[4]], 37: [("wait", kf(4, 5, 6, 7)), X2[5]], 38: [X2[6]], 39: [X2[7]],
            40: [C2[0], C2[1]], 41: [C2[2], C2[3]], 42: [K2[0], K2[1]],
            43: [("ds", f"ds_read_b32 v{V_L}, v{V_LA}"), K2[2]],
            44: [X0[0]], 45: [K2[3], X0[1]], 46: [X0[2]], 47: [X0[3]], 48: [X0[4]], 49: [X0[5]], 50: [X0[6]],
        }
        if self.o["eprog"]:
            fill[4] = [K0[2]]
            fill[5] = [("wait0",)]
            fill[40] = [("ds", f"ds_write_b32 v{V_PA}, v{V_P}"), C2[0]]
            fill[41] = [C2[1], C2[2]]
            fill[42] = [C2[3], K2[0]]
            fill[43] = [("ds", f"ds_read_b32 v{V_L}, v{V_LA}"), K2[1]]
            fill[44] = [K2[2], X0[0]]
            fill[45] = [X0[1]]
            fill[46] = [K2[3], X0[2]]
            fill[8].append(f"v_add_u32 v{V_P}, 1, v{V_P}")
        if a == 0:
            fill[5].append(flip(AV(0)))
            fill[6].append(flip(AV(1)))
            fill[7] += [flip(AV(2)), flip(AV(3))]
            fill[4 if self.o["eprog"] else 8].append(flip(AV(4)))
            fill[11].append(flip(AV(5)))
            fill[13].append(flip(AV(6)))
            fill[15].append(flip(AV(7)))
        if self.o.get("refresh"):
            for g in (1, 27, 40):
                fill[g].insert(0, f"s_add_u32 s{S_FRC}, s{S_FRC}, s{S_FRC}")
                fill[g + 1].insert(0, "s_cselect_b32 s72, 1, 0")
        if self.o.get("xslow"):
            lo, hi, amt = self.o["xslow"].split(",")
            k = len(self.sites)
            fill[20] = fill[20] + [f"s_sub_u32 s{S_T0}, s{S_NEED}, {int(lo) + 2}", f"s_cmp_ge_u32 s{S_T0}, {int(hi) - int(lo)}",
                                   f"s_cbranch_scc1 L_xs{k}", f"s_sleep {amt}", f"L_xs{k}:"]
        if a == 1:
            fill[0].insert(0, f"s_cmp_gt_u32 s{S_CNT}, {8 - self.o['deep']}")
            fill[1].insert(0, f"s_cselect_b32 s{S_FLIP}, s{S_FLIP}, 0")
        if a == 3:
            fill[5].append(flip(AK(0)))
            fill[6].append(flip(AK(1)))
            fill[7] += [flip(AK(2)), flip(AK(3))]
            fill[31].insert(0, f"s_sub_u32 s{S_CNT}, s{S_CNT}, 1")
            fill[33] = fill[33][:1] + [f"s_cmp_eq_u32 s{S_CNT}, 0", "s_cbranch_scc1 L_att_tail"] + fill[33][1:]
        self.stream(M, fill)

    def attention(self):
        e, o = self.e, self.o
        assert not self.lq
        if o["eprog"]:
            e(f"v_mov_b32 v{V_P}, 1")
            self.ds(f"ds_write_b32 v{V_PA}, v{V_P}")
        self.ds(f"ds_read_b32 v{V_L}, v{V_LA}")
        for k in range(7):
            e(f"v_exp_f32 v{E_ + k}, v{S_(0, 0) + k}")
        self.stamp("att0", "c")
        entry = [set(x) for x in self.lq]
        e(".p2align 3")
        e("L_att:")
        self.strict = True
        for a in range(4):
            self.tile(a)
        self.strict = False
        assert [set(x) for x in self.lq] == entry
        e("s_branch L_att")
        e("L_att_tail:")
        self.stamp("att1", "c")
        e(f"v_mov_b32 v{V_P}, 33")
        self.lwait0()
        self.ds(f"ds_write_b32 v{V_PA}, v{V_P}")
        self.ds(f"ds_read_b128 {v(V_TAG, 4)}, v{V_LA}")
        X2, C2, K2 = self.sm_ops(2, False)
        fill = {k: [X2[k + 1]] for k in range(7)}
        fill[7] = [C2[0], C2[1]]
        fill[8] = [C2[2], C2[3], K2[0], K2[1], K2[2]]
        self.stream(self.pv(1), fill)
        e(f"s_mul_i32 s{S_OB}, s{S_B}, 9\ns_mul_i32 s{S_T1}, s{S_WAVE}, 3\ns_add_u32 s{S_OB}, s{S_OB}, s{S_T1}")
        e(f"s_lshl_b32 s{S_OB}, s{S_OB}, 5\ns_add_u32 s{S_T0}, s{S_OB}, s{S_H}\ns_lshl_b32 s{S_T0}, s{S_T0}, 12")
        e(K2[3])
        e("v_lshlrev_b32 v1, 4, v0")
        self.lwait0()
        e(f"v_readfirstlane_b32 s{S_TAG}, v{V_TAG + 1}\nv_readfirstlane_b32 s{S_TAG + 1}, v{V_TAG + 2}")

        def norm(j):
            ops = [f"v_rcp_f32 v2, v{L_(j)}", f"v_rcp_f32 v3, v{L_(j)}", "s_nop 0"]
            for s in range(4):
                for r in range(O_(j, 2 * s), O_(j, 2 * s) + 8, 2):
                    ops.append(f"v_pk_mul_f32 v[{r}:{r + 1}], v[{r}:{r + 1}], v[2:3]")
                ops += self.pack_ops(j, s)
                ops.append(f"buffer_store_dwordx4 {v(Q_(j, s), 4)}, v1, {srd_(SRD_WS)}, s{S_T0} offen offset:{s * 1024} sc1")
            ops.append(f"s_add_u32 s{S_T0}, s{S_T0}, {32 * 4096}")
            return ops

        n0 = norm(0)
        if o["nopk"]:
            n1 = []
            for x in n0:
                if x.startswith("v_pk_mul") and len(n1) < 18:
                    r = int(x.split("[")[1].split(":")[0])
                    n1 += [f"v_mul_f32 v{r}, v2, v{r}", f"v_mul_f32 v{r + 1}, v2, v{r + 1}"]
                else:
                    n1.append(x)
            n0 = n1
        fill = {k: n0[2 * k:2 * k + 2] for k in range(8)}
        fill[8] = n0[16:]
        self.stream(self.pv(2), fill)
        for j in (1, 2):
            for x in norm(j):
                e(x)
        e(f"v_mov_b32 v{V_TAG}, s{S_TAG}\nv_mov_b32 v{V_TAG + 1}, s{S_TAG + 1}\nv_mov_b32 v{V_TAG + 2}, 0")
        self.stamp("stored", "c")

    def rare(self):
        e = self.e
        for k, target in enumerate(self.sites):
            e(f"L_stub{k}:\ns_call_b64 s[{S_RET}:{S_RET + 1}], {target}\ns_branch L_ret{k}")
        e("L_spin:")
        e(f"s_mov_b32 s{S_SPIN}, 0")
        e("L_spin1:")
        e(f"ds_read_b32 v{V_L}, v{V_LA}\ns_add_u32 s{S_SPIN}, s{S_SPIN}, 1\ns_waitcnt lgkmcnt(0)")
        e(f"v_cmp_gt_u32 vcc, s{S_NEED}, v{V_L}\ns_cmp_ge_u32 s{S_SPIN}, {SPIN_MAX}\ns_cbranch_scc1 L_spin2")
        if self.o.get("ssleep"):
            e(f"s_cbranch_vccz L_spin2\ns_sleep {self.o['ssleep']}\ns_branch L_spin1")
        else:
            e("s_cbranch_vccnz L_spin1")
        e("L_spin2:")
        e(f"s_setpc_b64 s[{S_RET}:{S_RET + 1}]")
        for j in range(3):
            s0 = S_(j, 0)
            e(f"L_rare{j}:")
            e("s_nop 7")
            for x in self.rowmax(j):
                e(x)
            e("v_max_f32 v1, 0, v1")
            e("v_exp_f32 v2, -v1\nv_exp_f32 v3, -v1\ns_nop 0")
            for r in list(range(O_(j, 0), O_(j, 0) + 32, 2)) + [L_(j), L_(j) + 2]:
                e(f"v_pk_mul_f32 v[{r}:{r + 1}], v[{r}:{r + 1}], v[2:3]")
            for r in range(4):
                e(f"v_sub_f32 v{NM(j) + r}, v{NM(j) + r}, v1")
            for k in range(8):
                e(f"v_sub_f32 v{s0 + k}, v{s0 + k}, v1")
            for k in range(8):
                e(f"v_exp_f32 v{s0 + k}, v{s0 + k}")
            e("s_nop 0")
            for k in range(4):
                e(f"v_cvt_pk_bf16_f32 v{P_(j) + k}, v{s0 + 2 * k}, v{s0 + 2 * k + 1}")
            e("s_nop 1")
            e(f"s_setpc_b64 s[{S_RET}:{S_RET + 1}]")

    def poll(self, name, areg, soff, pol="sc1"):
        e = self.e
        np_ = self.o.get("npoll", 1)
        if np_ > 1:
            regs = [2, 244, 246, 248][:np_]
            ld = lambda r: f"buffer_load_dwordx2 {v(r, 2)}, v{areg}, {srd_(SRD_WS)}, s{soff} offen {pol}"
            e(f"s_mov_b32 s{S_SPIN}, 0")
            for r in regs[:-1]:
                e(ld(r) + f"\ns_sleep {self.o.get('psleep', 1)}")
            e(f"L_{name}:")
            for k in range(np_):
                e(ld(regs[(k + np_ - 1) % np_]))
                e(f"s_waitcnt vmcnt({np_ - 1})\nv_cmp_ne_u64 vcc, s[{S_TAG}:{S_TAG + 1}], {v(regs[k], 2)}")
                e(f"s_add_u32 s{S_SPIN}, s{S_SPIN}, 1\ns_cbranch_vccz L_{name}_end")
            e(f"s_cmp_lt_u32 s{S_SPIN}, 0x80000\ns_cbranch_scc1 L_{name}")
            e(f"L_{name}_end:")
            return
        e(f"s_mov_b32 s{S_SPIN}, 0")
        e(f"L_{name}:")
        e(f"buffer_load_dwordx2 v[2:3], v{areg}, {srd_(SRD_WS)}, s{soff} offen {pol}")
        e(f"s_add_u32 s{S_SPIN}, s{S_SPIN}, 1\ns_waitcnt vmcnt(0)\nv_cmp_ne_u64 vcc, s[{S_TAG}:{S_TAG + 1}], v[2:3]")
        e(f"s_cmp_ge_u32 s{S_SPIN}, 0x40000\ns_cbranch_scc1 L_{name}_end")
        e(f"s_cbranch_vccz L_{name}_end\ns_sleep {self.o.get('psleep', 1)}\ns_branch L_{name}")
        e(f"L_{name}_end:")

    def signal(self, soff, areg=V_TAG + 2, mask=1, pol="sc1"):
        return [f"s_mov_b64 exec, {mask}",
                f"buffer_store_dwordx2 {v(V_TAG, 2)}, v{areg}, {srd_(SRD_WS)}, s{soff} offen {pol}",
                "s_mov_b64 exec, -1"]

    def projection(self):
        e, o = self.e, self.o
        ACC = lambda c, j: 16 + 12 * c + 4 * j
        WO = lambda x: 160 + 4 * x
        OA = 11
        D = o["odepth"]

        def OF(n, j):
            if n < 4:
                return v(Q_(j, n), 4)
            return a_(12 * (n - 4) + 4 * j, 4) if n < 25 else v(76 + 12 * (n - 25) + 4 * j, 4)

        def rw(n, c, x, hh):
            r, off = wbase(n)
            return ("ds", f"ds_read_b64_tr_b16 {v(WO(x) + 2 * hh, 2)}, v{RW + r} offset:{off + hh * 2560 + c * 32}")

        def ldo(n, j):
            r = []
            if n % 4 == 0 and j == 0:
                r += [f"s_bfe_u32 s{S_T1}, s{S_ORD}, {(3 << 16) | (n & 28):#x}",
                      f"s_lshl_b32 s{S_T1}, s{S_T1}, 12", f"s_add_u32 s{S_XO}, s{S_OB}, s{S_T1}"]
            r.append(f"buffer_load_dwordx4 {OF(n, j)}, v{OA + j}, {srd_(SRD_WS)}, s{S_XO} offen offset:{(n & 3) * 1024} {o['opol']}")
            return r

        wreg = lambda *xs: set().union(*[regs_of(v(WO(x), 4)) for x in xs])

        def kstep(n, cols, last):
            M, fill = [], {}
            for x, c in enumerate(cols):
                for j in range(3):
                    M.append((v(ACC(c, j), 4), v(WO(x), 4), OF(n, j), "0" if n == 0 else v(ACC(c, j), 4)))
                if not last:
                    fill.setdefault(3 * x + 2, []).append(rw(n + 1, c, x, 0))
                    fill.setdefault(min(3 * x + 3, 3 * len(cols) - 1), []).append(rw(n + 1, c, x, 1))
            for x in range(len(cols)):
                g = 3 * x - 2 if x else 3 * len(cols) - 2
                fill.setdefault(g, []).insert(0, ("wait", wreg(x)))
            return M, fill

        ALL = (0, 1, 2, 3, 4)
        for x in ALL:
            for hh in range(2):
                self.ds(rw(0, x, x, hh)[1])
        e(f"s_lshl3_add_u32 s{S_OB}, s{S_KG}, s{S_OB}\ns_lshl_b32 s{S_OB}, s{S_OB}, 12")
        e(f"v_add_u32 v{OA + 1}, {32 * 4096}, v1\nv_add_u32 v{OA + 2}, {64 * 4096}, v1\nv_mov_b32 v{OA}, v1")
        e(f"v_mov_b32 v{V_P}, 34\nv_and_b32 v14, 7, v0\nv_lshlrev_b32 v14, 9, v14")
        e(f"s_lshl2_add_u32 s{S_T2}, s{S_BH}, s{S_WAVE}\ns_lshl_b32 s{S_T2}, s{S_T2}, 7\ns_add_u32 s{S_T2}, s{S_T2}, {FLAG_A}")
        self.lwait(wreg(0))
        fa = o["flaga_at"]
        for n in range(4):
            M, fill = kstep(n, ALL, n == 3)
            if n == 0:
                fill.setdefault(13, []).append(("ds", f"ds_write_b32 v{V_PA}, v{V_P}"))
            if n == fa:
                fill.setdefault(14, []).extend(["s_waitcnt vmcnt(0)"] + self.signal(S_T2))
            self.stream(M, fill)
        self.stamp("own_done", "c")
        P1 = (0, 1, 4) if o["passes"] == 3 else (0, 1, 2, 4)
        L1 = 3 * len(P1)
        NM_ = self.nmix()
        if NM_ <= 8:
            e(f"s_mov_b32 s{S_NEED}, {33 + 8 - NM_}\ns_call_b64 s[{S_RET}:{S_RET + 1}], L_spin")
        for x, c in enumerate(P1):
            for hh in range(2):
                self.ds(rw(4, c, x, hh)[1])
        e(f"s_lshl_b32 s{S_T1}, s{S_I}, 9\ns_sub_u32 s{S_T2}, s{S_T2}, s{S_T1}")
        if o.get("pdelay"):
            e(f"s_mov_b32 s{S_NEED}, {o['pdelay']}\ns_call_b64 s[{S_RET}:{S_RET + 1}], L_spin")
        self.poll("polla", 14, S_T2, o["fpol"])
        self.stamp("poll_a", "c")
        for n in range(4, 4 + D):
            for j in range(3):
                for x in ldo(n, j):
                    e(x)
        e(f"s_lshl3_add_u32 s{S_PB}, s{S_B}, s{S_I}")
        e(f"s_mul_i32 s{S_PB}, s{S_PB}, {16 * 12288}\ns_lshl_b32 s{S_T0}, s{S_WAVE}, 12\ns_add_u32 s{S_PB}, s{S_PB}, s{S_T0}\ns_add_u32 s{S_PB}, s{S_PB}, {PART}")
        e(f"s_mul_i32 s{S_T0}, s{S_KG}, 12288\ns_add_u32 s{S_C}, s{S_PB}, s{S_T0}")
        e(f"s_mul_i32 s{S_T0}, s{S_KG}, {4 * 12288}\ns_add_u32 s{S_PB}, s{S_PB}, s{S_T0}")
        e("v_and_b32 v15, 15, v0\nv_mul_u32_u24 v15, 1280, v15\nv_lshrrev_b32 v7, 4, v0\nv_lshl_add_u32 v15, v7, 3, v15")
        SB = lambda k: 180 + 4 * k
        for k in range(9):
            e(f"v_mov_b32 v{SB(k) + 3}, s{S_TAG}")
        for k in range(6, 9):
            e(f"v_mov_b32 v{SB(k) + 2}, 0")
        self.lwait0()
        e(f"s_waitcnt vmcnt({3 * D - 3})")
        self.stamp("o_first", "c")
        rest = [c for c in (2, 3) if c not in P1]
        seq = [(c, n) for c in rest for n in range(4, 32)]
        b0 = len(P1)
        buf = lambda k: (k + b0) % 5
        for n in range(4, 32):
            M, fill = kstep(n, P1, n == 31)
            if n % 4 == 3 and n < 31 and n + 5 >= NM_:
                fill.setdefault(0, []).extend([f"s_mov_b32 s{S_NEED}, {33 + min(31, n + 5) - NM_}", ("ds", f"ds_read_b32 v{V_L}, v{V_LA}")])
                fill.setdefault(4, []).extend([("wait", regs_of(f"v{V_L}")), f"v_cmp_gt_u32 vcc, s{S_NEED}, v{V_L}"])
                fill.setdefault(7, []).insert(0, self.site("L_spin"))
            if n + D < 32:
                for j, g in enumerate((0, 4, 7) if L1 == 9 else (1, 4, 10)):
                    fill.setdefault(g, []).extend(ldo(n + D, j))
            if n < 31:
                fill.setdefault(L1 - 1, []).append(f"s_waitcnt vmcnt({3 * (min(D, 31 - n) - 1)})")
            if n == 31:
                for k in range(4):
                    x = buf(k)
                    g = 0 if x >= b0 else 3 * x + 2
                    fill.setdefault(g, []).extend([rw(seq[k][1], seq[k][0], x, 0), rw(seq[k][1], seq[k][0], x, 1)])
            self.stream(M, fill)
        self.stamp("pass1", "c")

        def send(c):
            cv = lambda d, a: f"v_cvt_pk_bf16_f32 v{d}, v{a}, v{a + 1}"
            st = lambda k, off: f"buffer_store_dwordx4 {v(SB(k), 4)}, v1, {srd_(SRD_WS)}, s{S_T0} offen offset:{off} sc1"
            if c == 4:
                out = []
                for j in range(3):
                    out.append([f"s_add_u32 s{S_T0}, s{S_C}, {j * 4 * 12288}", cv(SB(6 + j), ACC(4, j)), cv(SB(6 + j) + 1, ACC(4, j) + 2)])
                    out.append([st(6 + j, 2048)])
                return out
            a, k = ACC(c, 0), 2 * c
            return [[f"s_add_u32 s{S_T0}, s{S_KG}, {c + 1}", cv(SB(k), a), cv(SB(k) + 1, a + 2)],
                    [f"s_and_b32 s{S_T0}, s{S_T0}, 3", cv(SB(k) + 2, a + 4), cv(SB(k + 1), a + 6)],
                    [f"s_mul_i32 s{S_T0}, s{S_T0}, {4 * 12288}", cv(SB(k + 1) + 1, a + 8), cv(SB(k + 1) + 2, a + 10)],
                    [f"s_add_u32 s{S_T0}, s{S_T0}, s{S_C}", st(k, 0)], [st(k + 1, 1024)]]

        M, fill = [], {}
        for k, (c, n) in enumerate(seq):
            for j in range(3):
                M.append((v(ACC(c, j), 4), v(WO(buf(k)), 4), OF(n, j), v(ACC(c, j), 4)))
            if k + 4 < len(seq):
                c2, n2 = seq[k + 4]
                fill.setdefault(3 * k, []).extend([rw(n2, c2, buf(k + 4), 0), rw(n2, c2, buf(k + 4), 1)])
            if k + 1 < len(seq):
                fill.setdefault(3 * k + 2, []).insert(0, ("wait", wreg(buf(k + 1))))
        free = [g for g in range(4, len(M)) if g % 3]
        groups = [x for c in P1 for x in send(c)]
        for g, x in zip(free, groups):
            fill.setdefault(g, []).extend(x)
        if len(rest) == 2:
            for g, x in zip([g for g in free if g >= 84 + 4], send(2)):
                fill.setdefault(g, []).extend(x)
        self.stream(M, fill)
        self.stamp("mfma_done", "c")
        RB = lambda m, g: 76 + 12 * (m - 1) + 4 * g
        s_src = (S_N, S_CNT, S_SLOT)
        for m in range(1, 4):
            r = s_src[m - 1]
            e(f"s_add_u32 s{r}, s{S_KG}, {m}\ns_and_b32 s{r}, s{r}, 3\ns_mul_i32 s{r}, s{r}, 12288\ns_add_u32 s{r}, s{r}, s{S_PB}")
        e(f"s_cmp_eq_u32 s{S_KG}, 3\ns_cselect_b32 s{S_MASK}, 0, -1\ns_mov_b32 s{S_SPIN}, 0")
        e("L_collect:")
        for m in range(1, 4):
            for g in range(3):
                e(f"buffer_load_dwordx4 {v(RB(m, g), 4)}, v1, {srd_(SRD_WS)}, s{s_src[m - 1]} offen offset:{g * 1024} sc1")
        e(f"s_cmp_lg_u32 s{S_SPIN}, 0\ns_cbranch_scc1 L_col1")
        e(f"s_mul_i32 s{S_T0}, s{S_B}, 3\ns_add_u32 s{S_T0}, s{S_T0}, s{S_WAVE}\ns_mul_i32 s{S_T0}, s{S_T0}, {48 * 1280}")
        e(f"s_mul_i32 s{S_T1}, s{S_I}, 160\ns_add_u32 s{S_T0}, s{S_T0}, s{S_T1}")
        e(f"s_mul_i32 s{S_T1}, s{S_KG}, {16 * 1280}\ns_add_u32 s{S_T1}, s{S_T1}, s{S_T0}\ns_add_u32 s{S_T1}, s{S_T1}, 128")
        e(f"s_cmp_eq_u32 s{S_KG}, 3\ns_cselect_b32 s{S_T1}, 0x7000000, s{S_T1}")
        e(f"s_lshl_b32 s{S_T2}, s{S_KG}, 5\ns_add_u32 s{S_T0}, s{S_T0}, s{S_T2}")
        for j in (1, 2):
            e(f"s_cmp_lg_u32 s{S_KG}, {j}\ns_cbranch_scc1 L_own4_{j}")
            e(f"v_mov_b64 {v(ACC(4, 0), 2)}, {v(ACC(4, j), 2)}\nv_mov_b64 {v(ACC(4, 0) + 2, 2)}, {v(ACC(4, j) + 2, 2)}")
            e(f"L_own4_{j}:")
        e("L_col1:")
        x_or = lambda d, t, acc: f"v_bitop3_b32 v{d}, v{t}, s{S_TAG}, {acc} bitop3:0xbe"
        e("s_waitcnt vmcnt(6)")
        e(x_or(2, RB(1, 0) + 3, "0") + "\n" + x_or(2, RB(1, 1) + 3, "v2") + "\n" + x_or(3, RB(1, 2) + 3, "0"))
        for m in (2, 3):
            e(f"s_waitcnt vmcnt({3 * (3 - m)})")
            e(x_or(2, RB(m, 0) + 3, "v2") + "\n" + x_or(2, RB(m, 1) + 3, "v2") + "\n" + x_or(3, RB(m, 2) + 3, "v3"))
        e(f"v_and_or_b32 v2, v3, s{S_MASK}, v2\nv_cmp_ne_u32 vcc, 0, v2")
        e(f"s_add_u32 s{S_SPIN}, s{S_SPIN}, 1\ns_cmp_ge_u32 s{S_SPIN}, 0x40000\ns_cbranch_scc1 L_col2")
        e(f"s_cbranch_vccz L_col2\ns_sleep {o['csleep']}\ns_branch L_collect")
        e("L_col2:")
        self.stamp("rb", "c")
        e(f"s_mov_b32 s{S_MASK}, 0xffff0000")
        for sl in range(4):
            a0 = ACC(3, sl) if sl < 3 else ACC(4, 0)
            for m in range(1, 4):
                for h in range(2):
                    w = 2 * sl + h
                    src = RB(m, w // 3) + w % 3 if sl < 3 else RB(m, 2) + h
                    t = 112 + 4 * (m - 1) + 2 * h
                    e(f"v_lshlrev_b32 v{t}, 16, v{src}\nv_and_b32 v{t + 1}, s{S_MASK}, v{src}")
            for r in (0, 2):
                e(f"v_pk_add_f32 {v(a0 + r, 2)}, {v(a0 + r, 2)}, {v(112 + r, 2)}")
                e(f"v_pk_add_f32 {v(116 + r, 2)}, {v(116 + r, 2)}, {v(120 + r, 2)}")
            for r in (0, 2):
                e(f"v_pk_add_f32 {v(a0 + r, 2)}, {v(a0 + r, 2)}, {v(116 + r, 2)}")
            e(f"v_cvt_pk_bf16_f32 v{124 + 2 * sl}, v{a0}, v{a0 + 1}\nv_cvt_pk_bf16_f32 v{125 + 2 * sl}, v{a0 + 2}, v{a0 + 3}")
            e(f"buffer_store_dwordx2 {v(124 + 2 * sl, 2)}, v15, {srd_(SRD_OUT)}, s{S_T0 if sl < 3 else S_T1} offen")
            if sl < 2:
                e(f"s_add_u32 s{S_T0}, s{S_T0}, {16 * 1280}")
        if o["stamps"]:
            e("s_waitcnt vmcnt(0)")
            self.stamp("end", "c")
            e(f"s_cmp_lg_u32 s{S_WAVE}, {o.get('swave', 0)}\ns_cbranch_scc1 L_end")
            if o.get("dly"):
                a, b, k = o["dly"].split(",")
                reg = {x[0]: x[1] for x in self.stamps if x[2] == "c"}
                reg["start"] = 94
                e("s_waitcnt lgkmcnt(0)")
                e(f"s_sub_u32 s{S_T0}, s{reg[b]}, s{reg[a]}\ns_mul_i32 s{S_T0}, s{S_T0}, {k}\ns_min_u32 s{S_T0}, s{S_T0}, 50000")
                e("L_dly:")
                e(f"s_memrealtime s[{S_RET}:{S_RET + 1}]\ns_waitcnt lgkmcnt(0)")
                e(f"s_sub_u32 s{S_T1}, s{S_RET}, s{reg['end']}\ns_cmp_lt_u32 s{S_T1}, s{S_T0}\ns_cbranch_scc1 L_dly")
                e("s_branch L_end")
            self.stamp_store("c")
        e("L_end:\ns_endpgm")

    def build(self):
        self.sites = []
        self.prologue()
        self.loader()
        self.lq = []
        self.compute_setup()
        self.qphase()
        self.attention()
        self.projection()
        self.rare()
        self.e("L_code_end:")
        self.expand_stamps()
        bad = check(self.L)
        assert bad == 0, f"{bad} hazards"
        hdr = open("cdna_kernels/" + NAME + ".s.ref").read().split("; Override launch")[0]
        txt = hdr
        txt += "; @launch grid=(256,1,1) block=(256,1,1) lds=163840\n"
        if self.stamps:
            txt += "; stamps: " + " ".join(x[0] for x in self.stamps) + "\n"
        txt += f""".amdgcn_target "amdgcn-amd-amdhsa--gfx950"
.text
.globl {NAME}_kernel
.p2align 8
.type {NAME}_kernel,@function
{NAME}_kernel:
"""
        for ln in self.L:
            txt += (ln if ln.endswith(":") else "    " + ln) + "\n"
        txt += f"""
.section .rodata,"a"
.p2align 6
.amdhsa_kernel {NAME}_kernel
  .amdhsa_next_free_vgpr 512
  .amdhsa_next_free_sgpr 102
  .amdhsa_accum_offset 256
  .amdhsa_group_segment_fixed_size 0
  .amdhsa_kernarg_size 64
  .amdhsa_user_sgpr_count 2
  .amdhsa_user_sgpr_kernarg_segment_ptr 1
  .amdhsa_system_sgpr_workgroup_id_x 1
  .amdhsa_float_denorm_mode_32 3
.end_amdhsa_kernel
"""
        return txt


def main():
    out = sys.argv[1]
    kw = {}
    for arg in sys.argv[2:]:
        k, val = arg.split("=", 1)
        if val in ("True", "False"):
            val = val == "True"
        elif val.lstrip("-").isdigit() and k not in ("mapping", "lag"):
            val = int(val)
        kw[k] = val
    g = Gen(**kw)
    txt = g.build()
    open(out, "w").write(txt)
    print(out, "lines", len(g.L), "stamps", [x[0] for x in g.stamps])


if __name__ == "__main__":
    main()
```
